```python
import torch

def _softmax(x, axis=-1):
    return torch.softmax(x, dim=axis)
def _gelu(x):
    return torch.nn.functional.gelu(x, approximate="tanh")
def _silu(x):
    return torch.nn.functional.silu(x)
def _sigmoid(x):
    return torch.sigmoid(x)
def _layernorm(x, axis=-1, eps=1e-5):
    m = x.mean(dim=axis, keepdim=True)
    v = x.var(dim=axis, keepdim=True, unbiased=False)
    return (x - m) / torch.sqrt(v + eps)
def _scatter_add(tgt, idx, src, axis=0):
    return tgt.clone().index_add_(axis, idx, src)
def _segment_sum(src, seg, n):
    out = torch.zeros((n,) + src.shape[1:], dtype=src.dtype)
    return out.index_add_(0, seg, src)
def _pad(x, pw):
    flat = tuple(v for pair in reversed(pw) for v in pair)
    return torch.nn.functional.pad(x, flat)

kernel_name = 'interleave_layers__spectral_gfnet__grouped_kv_mqa__prompt'

def setup_inputs():

    _w = (lambda a: (lambda t: t.to(torch.bfloat16) if t.is_floating_point() else t)(torch.as_tensor(a)))
    def _A_setup():
        B, S, D = 1, 2048, 512
        Df = D // 2 + 1
        return {
            "x": _w((lambda *s: torch.randn(*s, dtype=torch.bfloat16) * 0.05)(B, S, D)),
            "w_r": _w((lambda *s: torch.randn(*s, dtype=torch.bfloat16) * 0.8)(S, Df) * 0.02),
            "w_i": _w((lambda *s: torch.randn(*s, dtype=torch.bfloat16) * 0.8)(S, Df) * 0.02),
        }
    _A_in = _A_setup()

    def _B_setup():
        B, S, D, H = 1, 2048, 512, 32
        Dh = D // H
        return {
            "x": _w((lambda *s: torch.randn(*s, dtype=torch.bfloat16) * 0.05)(B, S, D)),
            "wq": _w((lambda *s: torch.randn(*s, dtype=torch.bfloat16) * 0.05)(D, H * Dh)),
            "wk": _w((lambda *s: torch.randn(*s, dtype=torch.bfloat16) * 0.05)(D, Dh)),
            "wv": _w((lambda *s: torch.randn(*s, dtype=torch.bfloat16) * 0.05)(D, Dh)),
            "wo": _w((lambda *s: torch.randn(*s, dtype=torch.bfloat16) * 0.05)(H * Dh, D)),
        }
    _B_in = _B_setup()

    return {
        "A_x": _A_in["x"],
        "A_w_r": _A_in["w_r"],
        "A_w_i": _A_in["w_i"],
        "B_x": _B_in["x"],
        "B_wq": _B_in["wq"],
        "B_wk": _B_in["wk"],
        "B_wv": _B_in["wv"],
        "B_wo": _B_in["wo"],
    }

def reference(A_x, A_w_r, A_w_i, B_x, B_wq, B_wk, B_wv, B_wo):
    def _A_ref(x, w_r, w_i):
        B, S, D = x.shape
        X = (lambda x, axes=(-2,-1): torch.fft.rfft2(x.float(), dim=axes))(x, axes=(-2, -1))
        W = w_r + 1j * w_i
        X = X * W
        y = (lambda x, s, axes=(-2,-1): torch.fft.irfft2(x, s=s, dim=axes).to(torch.bfloat16))(X, (S, D), axes=(-2, -1))
        return y

    def _B_ref(x, wq, wk, wv, wo):
        B, S, D = x.shape
        H = 32
        Dh = D // H
        q = (lambda x, *d: x.permute(*d))((x @ wq).reshape(B, S, H, Dh), 0, 2, 1, 3)
        k = x @ wk
        v = x @ wv
        scores = torch.einsum("bhqd,bkd->bhqk", q, k) * (Dh ** -0.5)
        p = _softmax(scores, axis=-1)
        o = torch.einsum("bhqk,bkd->bhqd", p, v)
        return (lambda x, *d: x.permute(*d))(o, 0, 2, 1, 3).reshape(B, S, H * Dh) @ wo

    x = A_x
    x = x + _A_ref(_layernorm(x, axis=-1), A_w_r, A_w_i)
    x = x + _B_ref(_layernorm(x, axis=-1), B_wq, B_wk, B_wv, B_wo)
    x = x + _A_ref(_layernorm(x, axis=-1), A_w_r, A_w_i)
    x = x + _B_ref(_layernorm(x, axis=-1), B_wq, B_wk, B_wv, B_wo)
    return x
```

```python
import re, struct

def v(n, c=1):
    return f'v{n}' if c == 1 else f'v[{n}:{n+c-1}]'
def a(n, c=1):
    return f'a{n}' if c == 1 else f'a[{n}:{n+c-1}]'
def s(n, c=1):
    return f's{n}' if c == 1 else f's[{n}:{n+c-1}]'
def fl(x):
    return '0x%08x' % struct.unpack('<I', struct.pack('<f', x))[0]

TRANS = {'v_exp_f32', 'v_log_f32', 'v_rcp_f32', 'v_rsq_f32', 'v_sqrt_f32', 'v_sin_f32', 'v_cos_f32'}
REG = re.compile(r'^(-|\|)?([vas])(?:\[(\d+):(\d+)\]|(\d+))\|?$')

def regs_of(tok):
    tok = tok.strip()
    if tok in ('vcc', 'exec'):
        return {tok + '_lo', tok + '_hi'}
    if tok in ('vcc_lo', 'vcc_hi', 'exec_lo', 'exec_hi', 'm0'):
        return {tok}
    m = REG.match(tok)
    if not m:
        return set()
    k = m.group(2)
    if m.group(5) is not None:
        return {k + m.group(5)}
    return {k + str(i) for i in range(int(m.group(3)), int(m.group(4)) + 1)}

class Ins:
    __slots__ = ('text', 'op', 'kind', 'w', 'r', 'A', 'B', 'C', 'D', 'passes', 'dpp', 'ws', 'label', 'target', 'wide', 'lds', 'data', 'opsel')
    def __init__(self, text):
        self.text = text
        t = text.split(';')[0].strip()
        self.label = None; self.target = None
        self.w = set(); self.r = set(); self.A = self.B = self.C = self.D = set()
        self.passes = 0; self.dpp = set(); self.ws = 1; self.wide = False; self.lds = False; self.data = set(); self.opsel = False
        if not t or t.startswith('.'):
            self.kind = 'none'; self.op = ''; self.ws = 0; return
        if t.endswith(':'):
            self.kind = 'label'; self.op = ''; self.label = t[:-1]; self.ws = 0; return
        parts = t.split(None, 1)
        op = parts[0]; self.op = op
        rest = parts[1] if len(parts) > 1 else ''
        ops = [o.strip() for o in rest.split(',')]
        mods = ''
        if ops and ' ' in ops[-1]:
            x = ops[-1].split(None, 1); ops[-1] = x[0]; mods = x[1]
        R = [regs_of(o) for o in ops]
        base = re.sub(r'_(e32|e64|dpp|sdwa)$', '', op)
        self.op = base
        if base.startswith('v_mfma'):
            self.kind = 'mfma'
            self.D, self.A, self.B, self.C = R[0], R[1], R[2], R[3]
            self.w = set(self.D); self.r = self.A | self.B | self.C
            self.passes = 8 if '32x32x16' in base else 4
        elif base.startswith('v_'):
            self.kind = 'valu'
            if base.startswith('v_permlane') or base.startswith('v_swap'):
                self.w = R[0] | R[1]; self.r = R[0] | R[1]
            elif base in ('v_add_co_u32', 'v_sub_co_u32', 'v_addc_co_u32', 'v_subb_co_u32', 'v_subrev_co_u32'):
                self.w = R[0] | R[1]
                for x in R[2:]: self.r |= x
            else:
                self.w = set(R[0])
                for x in R[1:]: self.r |= x
                if base.startswith(('v_fmac', 'v_mac', 'v_dot2c', 'v_pk_fmac')) or 'row_' in mods or 'quad_perm' in mods:
                    self.r |= R[0]
                if base.startswith('v_cmpx'):
                    self.w |= {'exec_lo', 'exec_hi'}
            if 'row_' in mods or 'quad_perm' in mods or 'wave_' in mods:
                self.dpp = set(R[1])
            if 'op_sel' in mods and not base.startswith('v_pk') and not base.startswith('v_dot'):
                self.opsel = True
            if 'dst_sel' in mods: self.opsel = True
        elif base.startswith('ds_'):
            self.kind = 'ds'
            if base.startswith(('ds_read', 'ds_bpermute', 'ds_permute', 'ds_swizzle')) or '_rtn' in base:
                self.w = set(R[0])
                for x in R[1:]: self.r |= x
            else:
                for x in R: self.r |= x
        elif base.startswith(('buffer_', 'global_', 'flat_')):
            self.kind = 'vmem'
            islds = ' lds' in (' ' + mods) or 'load_lds' in base
            self.lds = islds
            if 'load' in base and not islds:
                self.w = set(R[0])
                for x in R[1:]: self.r |= x
                if 'd16' in base: self.r |= R[0]
            else:
                for x in R: self.r |= x
                if 'store' in base and ('x3' in base or 'x4' in base):
                    self.wide = True
                    self.data = R[0] if base.startswith('buffer') else R[1]
            if islds: self.r |= {'m0'}
        elif base.startswith('s_'):
            self.kind = 'salu'
            if base == 's_nop':
                self.ws = int(ops[0], 0) + 1
            elif base.startswith(('s_cbranch', 's_branch')):
                self.target = ops[0]
            elif base.startswith(('s_cmp', 's_waitcnt', 's_barrier', 's_endpgm', 's_setprio', 's_sleep', 's_bitcmp')):
                for x in R: self.r |= x
            else:
                self.w = set(R[0])
                for x in R[1:]: self.r |= x
                if 'saveexec' in base: self.w |= {'exec_lo', 'exec_hi'}
        else:
            raise ValueError('unknown op ' + text)

def isv(r): return r[0] in 'va' and r[1:].isdigit()
def vg(st): return {r for r in st if isv(r)}
def sg(st): return {r for r in st if not isv(r)}

def need(p, c):
    n = 0
    if p.kind == 'valu':
        pw = vg(p.w); ps = sg(p.w)
        isdot = p.op.startswith('v_dot')
        if c.kind == 'mfma' and pw & c.r: n = max(n, 3 if isdot else 2)
        if c.kind == 'valu':
            if p.op in TRANS and c.op not in TRANS and pw & c.r: n = max(n, 1)
            if p.op in TRANS and c.op in TRANS and pw & c.r: n = max(n, 1)
            if pw & c.dpp: n = max(n, 2)
            if c.op.startswith('v_permlane') and pw & c.r: n = max(n, 2)
            if c.op.startswith(('v_readlane', 'v_readfirstlane')) and pw & c.r: n = max(n, 1)
            rd = set(c.r)
            if c.op.startswith('v_cndmask') and not sg(c.r): rd |= {'vcc_lo', 'vcc_hi'}
            if c.op in ('v_addc_co_u32', 'v_subb_co_u32'): rd |= {'vcc_lo', 'vcc_hi'}
            if ps & rd: n = max(n, 4 if c.op.startswith(('v_readlane', 'v_writelane')) else 2)
            if p.opsel and pw & (c.r | c.w): n = max(n, 1)
            if isdot and pw & (c.r | c.w):
                if c.op == p.op:
                    ops = [o.strip() for o in c.text.split(';')[0].split(None, 1)[1].split(',')]
                    ab = regs_of(ops[1].split()[0]) | regs_of(ops[2].split()[0])
                    if pw & ab: n = max(n, 3)
                else:
                    n = max(n, 3)
            if 'exec_lo' in ps and (c.dpp or c.op.startswith(('v_permlane', 'v_readlane', 'v_readfirstlane'))): n = max(n, 5)
        if c.kind in ('vmem', 'ds'):
            if ps & c.r: n = max(n, 5)
            if isdot and pw & c.r: n = max(n, 3)
            if p.op in TRANS and pw & c.r: n = max(n, 1)
        if c.kind == 'mfma' and 'exec_lo' in ps: n = max(n, 4)
    elif p.kind == 'mfma':
        big = 12 if p.passes == 8 else 8
        if c.kind == 'mfma':
            if p.D & c.C:
                if not (p.D == c.C and p.passes == c.passes): n = max(n, big - 2)
            if p.D & (c.A | c.B): n = max(n, big)
            if p.D & c.D and not (p.D == c.C): n = max(n, big)
        elif c.kind in ('valu', 'vmem', 'ds'):
            if p.D & (c.r | c.w): n = max(n, big)
            if c.kind == 'valu' and p.C & c.w: n = max(n, 7 if p.passes == 8 else 3)
            if c.kind in ('vmem', 'ds') and p.C & c.w: n = max(n, 7 if p.passes == 8 else 3)
    elif p.kind == 'salu':
        if 'm0' in p.w and (c.lds or 'addtid' in c.op): n = max(n, 1)
    elif p.kind == 'vmem':
        if p.wide and c.kind in ('valu', 'mfma') and p.data & c.w: n = max(n, 2)
        if p.wide and c.kind in ('vmem', 'ds') and p.data & c.w: n = max(n, 1)
    return n

def fix_hazards(lines, name=''):
    ins = [Ins(l) for l in lines]
    out = []
    nfix = 0
    def back(seq, c):
        d = 0; miss = 0
        for p in reversed(seq):
            if d >= 14: break
            if p.kind in ('none', 'label'): continue
            if p.op in ('s_branch', 's_endpgm'): break
            n = need(p, c)
            if n - d > miss: miss = n - d
            d += p.ws
        return miss
    for c in ins:
        if c.kind not in ('none', 'label'):
            m = back(out[-40:], c)
            if m > 0:
                out.append(Ins(f'    s_nop {m-1}'))
                nfix += m
        out.append(c)
    lab = {i.label: k for k, i in enumerate(out) if i.kind == 'label'}
    for k, b in enumerate(out):
        if b.target is not None:
            pre = out[max(0, k - 40):k] + [Ins('s_nop 0')]
            t = lab[b.target]
            seq = list(pre)
            cnt = 0
            for c in out[t:t + 40]:
                if c.kind in ('none', 'label'): continue
                m = back(seq, c)
                if m > 0:
                    raise RuntimeError(f'{name}: hazard across branch {b.text.strip()} -> {c.text.strip()} missing {m}')
                seq.append(c); cnt += c.ws
                if cnt > 14 or c.op in ('s_branch', 's_endpgm'): break
    return [i.text for i in out], nfix

class Kern:
    def __init__(self, name, grid, block, lds, vgpr, sgpr=96, agpr=0):
        self.name = name; self.grid = grid; self.block = block; self.lds = lds
        self.vgpr = vgpr; self.sgpr = sgpr; self.agpr = agpr
        self.lines = []
    def __call__(self, txt):
        for l in txt.split('\n'):
            l = l.strip()
            if not l: continue
            self.lines.append(l if l.endswith(':') and ' ' not in l else '    ' + l)
    def label(self, n):
        self.lines.append(f'{n}:')
    def srd(self, d, blo, size, off=0):
        if off:
            self(f's_add_u32 s{d}, s{blo}, {hex(off)}\ns_addc_u32 s{d+1}, s{blo+1}, 0')
        elif d != blo:
            self(f's_mov_b32 s{d}, s{blo}\ns_mov_b32 s{d+1}, s{blo+1}')
        self(f's_mov_b32 s{d+2}, {hex(size)}\ns_mov_b32 s{d+3}, 0x20000')
    def text(self):
        body, nf = fix_hazards(self.lines, self.name)
        mx = 0
        for l in body:
            for m in re.finditer(r'\bv\[?(\d+)(?::(\d+))?', l.split(';')[0]):
                mx = max(mx, int(m.group(2) or m.group(1)))
        assert mx < self.vgpr, (self.name, mx, self.vgpr)
        self.info = f'{self.name}: {len(body)} lines, {nf} nop states inserted, max v{mx}'
        return f'.globl {self.name}\n.p2align 8\n.type {self.name},@function\n{self.name}:\n' + '\n'.join(body) + '\n'
    def desc(self):
        acc = (self.vgpr + 3) // 4 * 4
        return f'''.p2align 6
.amdhsa_kernel {self.name}
  .amdhsa_next_free_vgpr {acc + self.agpr}
  .amdhsa_next_free_sgpr {self.sgpr}
  .amdhsa_accum_offset {acc}
  .amdhsa_group_segment_fixed_size 0
  .amdhsa_kernarg_size 88
  .amdhsa_user_sgpr_count 2
  .amdhsa_user_sgpr_kernarg_segment_ptr 1
  .amdhsa_system_sgpr_workgroup_id_x 1
.end_amdhsa_kernel
'''
```

```python
from asmlib import *
from layout import *
import math

PITCH = 1056
STAT = 64 * PITCH
S0_LDS = STAT + 256
N_MAIN, N_WO, N_WQ, N_KV, N_FT, N_WOF = 256, 64, 64, 8, 64, 32
S0_GRID = N_MAIN + N_WO + N_WQ + N_KV + N_FT + N_WOF

VL, VI, VG = 0, 2, 3

def fgen(k, F, T, alpha, beta, scale, zero_dc, vsgn=None):
    fp, f, ph, amp, w, a0 = T + 24, T + 25, T + 26, T + 27, T + 28, T + 29
    C = [T, T + 8, T + 16]
    k(f'''
    s_lshl_b32 s22, s31, 6
    s_lshl_b32 s23, s3, 4
    s_add_u32 s22, s22, s23
    v_add_u32 {v(fp)}, s22, {v(VI)}
    v_lshrrev_b32 {v(f)}, 1, {v(fp)}
    v_and_b32 {v(ph)}, 1, {v(fp)}
    v_cvt_f32_u32 {v(ph)}, {v(ph)}
    v_mul_f32 {v(ph)}, 0.25, {v(ph)}
    v_mov_b32 {v(w)}, 0x100
    v_cmp_eq_u32 vcc, 1, {v(fp)}
    v_mov_b32 {v(amp)}, {fl(scale / 16)}
    v_mov_b32 {v(a0)}, {fl(scale / math.sqrt(512))}
    v_cndmask_b32 {v(f)}, {v(f)}, {v(w)}, vcc
    v_cndmask_b32 {v(ph)}, {v(ph)}, 0, vcc
    v_cmp_gt_u32 vcc, 2, {v(fp)}
    v_cvt_f32_u32 {v(w)}, {v(f)}
    v_mul_f32 {v(w)}, {fl(1 / 512)}, {v(w)}
    v_cndmask_b32 {v(amp)}, {v(amp)}, {v(a0)}, vcc
    ''')
    if zero_dc:
        k(f'''
        v_cmp_eq_u32 vcc, 0, {v(fp)}
        s_nop 1
        v_cndmask_b32 {v(amp)}, {v(amp)}, 0, vcc
        ''')
    if vsgn is not None:
        k(f'''
        v_lshlrev_b32 {v(vsgn)}, 31, {v(f)}
        v_or_b32 {v(vsgn)}, 1.0, {v(vsgn)}
        ''')
    k(f'''
    v_cvt_f32_u32 {v(a0)}, {v(VG)}
    v_mul_f32 {v(a0)}, {fl(alpha)}, {v(a0)}
    v_fma_f32 {v(a0)}, {v(a0)}, {v(w)}, {v(ph)}
    ''')
    for kk in range(2):
        for j in range(8):
            d = 32 * kk + (j % 4) + beta * (j // 4)
            k(f'v_fmamk_f32 {v(C[kk] + j)}, {v(w)}, {fl(d)}, {v(a0)}')
        for j in range(8):
            k(f'v_fract_f32 {v(C[kk] + j)}, {v(C[kk] + j)}')
        for j in range(8):
            k(f'v_cos_f32 {v(C[kk] + j)}, {v(C[kk] + j)}')
        for j in range(8):
            k(f'v_mul_f32 {v(C[kk] + j)}, {v(amp)}, {v(C[kk] + j)}')
        for j in range(4):
            k(f'v_cvt_pk_bf16_f32 {v(F + 4 * kk + j)}, {v(C[kk] + 2 * j)}, {v(C[kk] + 2 * j + 1)}')
    m = ph
    k(f'''
    v_mul_f32 {v(m)}, {fl(32.0)}, {v(w)}
    v_fract_f32 {v(m)}, {v(m)}
    v_cos_f32 {v(m)}, {v(m)}
    s_nop 0
    v_add_f32 {v(m)}, {v(m)}, {v(m)}
    ''')
    for kk in range(2, 8):
        c0, c1, c2 = C[kk % 3], C[(kk - 1) % 3], C[(kk - 2) % 3]
        for j in range(8):
            k(f'v_fma_f32 {v(c0 + j)}, {v(m)}, {v(c1 + j)}, -{v(c2 + j)}')
        for j in range(4):
            k(f'v_cvt_pk_bf16_f32 {v(F + 4 * kk + j)}, {v(c0 + 2 * j)}, {v(c0 + 2 * j + 1)}')

def s0_rows(k, main):
    F = 8; ACC = 40; BUF = 72; T = 72
    ONES = 104; ACCS = 108; SQ = 112; WTR = 116; AD = 124; SGN = 128; VT = 129; VT2 = 130; VT3 = 131; WTH = 132
    NB = 8
    if main:
        k('''
        s_and_b32 s22, s2, 7
        s_lshl_b32 s22, s22, 2
        s_lshr_b32 s23, s2, 3
        s_and_b32 s23, s23, 3
        s_add_u32 s37, s22, s23          ; rb
        s_lshr_b32 s31, s2, 5            ; cb
        s_lshr_b32 s22, s37, 4
        s_lshl_b32 s28, s22, 10          ; 1024*kappa
        s_lshr_b32 s22, s37, 1
        s_and_b32 s22, s22, 3
        s_lshl_b32 s22, s22, 8
        s_add_u32 s28, s28, s22          ; +256 gg
        s_and_b32 s22, s37, 8
        s_lshl_b32 s22, s22, 1
        s_add_u32 s28, s28, s22          ; +16 t
        s_and_b32 s22, s37, 1
        s_lshl_b32 s22, s22, 3
        s_add_u32 s28, s28, s22          ; +8 i3
        s_and_b32 s22, s3, 1
        s_lshl_b32 s22, s22, 7
        s_add_u32 s28, s28, s22
        s_lshr_b32 s22, s3, 1
        s_add_u32 s28, s28, s22
        s_lshl_b32 s28, s28, 10
        ''')
        A_, B_ = 32768, 2048
        k('s_waitcnt lgkmcnt(0)')
        k.srd(24, 4, 2 * MB)
    else:
        k('''
        s_sub_u32 s22, s2, 256
        s_lshr_b32 s37, s22, 3
        s_and_b32 s31, s22, 7            ; cb
        s_lshl_b32 s28, s37, 6
        s_lshr_b32 s22, s3, 1
        s_lshl_b32 s22, s22, 5
        s_add_u32 s28, s28, s22
        s_and_b32 s22, s3, 1
        s_lshl_b32 s22, s22, 2
        s_add_u32 s28, s28, s22
        s_lshl_b32 s28, s28, 10
        ''')
        A_, B_ = 1024, 8192
        k('s_waitcnt lgkmcnt(0)')
        k.srd(24, 18, 512 * 1024)
    k(f'''
    v_lshlrev_b32 v4, 4, {v(VL)}
    s_mul_i32 s32, s3, {16 * PITCH}
    s_mov_b32 m0, s32
    ''')
    for m in range(16):
        if m:
            k(f's_add_u32 m0, m0, {PITCH}')
            d = A_ if m % 4 else B_ - 3 * A_
            k(f's_add_u32 s28, s28, {d & 0xffffffff:#x}')
        else:
            k('s_nop 0')
        k('buffer_load_dwordx4 v4, s[24:27], s28 offen lds')
    if main:
        k.srd(40, 6, 2048 * 514 + 4)
        k.srd(44, 8, 2048 * 514 + 4)
        k(f'''
        s_and_b32 s22, s2, 3
        s_lshl_b32 s22, s22, 6
        v_add_u32 {v(VT)}, s22, {v(VL)}          ; f
        v_mov_b32 {v(VT2)}, 0x100
        v_cmp_eq_u32 vcc, 0, {v(VT)}
        s_lshr_b32 s22, s2, 2
        s_and_b32 s23, s22, 7                 ; k1b
        v_cndmask_b32 {v(VT2)}, {v(VT)}, {v(VT2)}, vcc
        v_lshlrev_b32 {v(VT2)}, 1, {v(VT2)}
        v_lshlrev_b32 {v(VT)}, 13, {v(VT)}
        s_lshr_b32 s22, s22, 3                ; k2b
        s_lshl_b32 s23, s23, 3
        s_lshl_b32 s33, s3, 1
        s_add_u32 s23, s23, s33               ; k1 (e=0)
        s_lshl_b32 s33, s22, 8
        s_add_u32 s33, s33, s23
        s_mul_i32 s33, s33, 514
        ''')
        for r in range(4):
            if r: k(f's_add_u32 s33, s33, {64 * 514}')
            for e in range(2):
                k(f'buffer_load_ushort {v(WTR + 4 * e + r)}, {v(VT2)}, s[40:43], s33 offen offset:{514 * e}')
                k(f'buffer_load_ushort {v(WTH + 4 * e + r)}, {v(VT2)}, s[44:47], s33 offen offset:{514 * e}')
        k('''
        s_lshr_b32 s33, s23, 4
        s_lshl_b32 s33, s33, 11
        s_and_b32 s23, s23, 15
        s_lshl_b32 s23, s23, 4
        s_add_u32 s33, s33, s23
        s_lshl_b32 s22, s22, 8
        s_add_u32 s38, s33, s22
        ''')
    fgen(k, F, T, 8.0, 4, 1.0, False, SGN)
    k(f'''
    v_mul_u32_u24 {v(VT3)}, {PITCH}, {v(VI)}
    v_lshl_add_u32 {v(VT3)}, {v(VG)}, 4, {v(VT3)}
    ''')
    if main:
        for u in range(4):
            k(f's_xor_b32 s22, s3, {u}\ns_mul_i32 s22, s22, {16 * PITCH}\nv_add_u32 {v(AD + u)}, s22, {v(VT3)}')
        for j in range(4):
            k(f'v_mov_b32 {v(ONES + j)}, 0x3f803f80\nv_mov_b32 {v(SQ + j)}, 0')
        k('s_waitcnt vmcnt(16)')
    else:
        k('s_waitcnt vmcnt(0)')
    k('s_barrier')
    reads = [(kk, u) for kk in range(16) for u in range(4)]
    def rd(n):
        kk, u = reads[n]
        if main:
            k(f'ds_read_b128 {v(BUF + 4 * (n % NB), 4)}, {v(AD + u)} offset:{64 * kk}')
        else:
            k(f'ds_read_b128 {v(BUF + 4 * (n % NB), 4)}, {v(VT3)} offset:{64 * kk + 16 * PITCH * u}')
    for n in range(NB): rd(n)
    for n, (kk, u) in enumerate(reads):
        out = min(NB, len(reads) - n)
        k(f's_waitcnt lgkmcnt({out - 1})')
        acc = ACC + 16 * (kk // 8) + 4 * u
        b = BUF + 4 * (n % NB)
        k(f'v_mfma_f32_16x16x32_bf16 {v(acc, 4)}, {v(b, 4)}, {v(F + 4 * (kk % 8), 4)}, {"0" if kk % 8 == 0 else v(acc, 4)}')
        if main and u == 0:
            k(f'v_mfma_f32_16x16x32_bf16 {v(ACCS, 4)}, {v(ONES, 4)}, {v(b, 4)}, {"0" if kk == 0 else v(ACCS, 4)}')
            for j in range(4):
                k(f'v_dot2c_f32_bf16 {v(SQ + j)}, {v(b + j)}, {v(b + j)}')
        if n + NB < len(reads): rd(n + NB)
    if main:
        t = BUF
        k(f'''
        v_add_f32 {v(SQ)}, {v(SQ)}, {v(SQ + 1)}
        v_add_f32 {v(SQ + 2)}, {v(SQ + 2)}, {v(SQ + 3)}
        v_add_f32 {v(SQ)}, {v(SQ)}, {v(SQ + 2)}
        v_mov_b32 {v(t)}, {v(SQ)}
        v_permlane32_swap_b32 {v(SQ)}, {v(t)}
        v_add_f32 {v(SQ)}, {v(SQ)}, {v(t)}
        v_mov_b32 {v(t)}, {v(SQ)}
        v_permlane16_swap_b32 {v(SQ)}, {v(t)}
        v_add_f32 {v(SQ)}, {v(SQ)}, {v(t)}
        v_mov_b32 {v(t + 1)}, {fl(1e-5)}
        v_fmamk_f32 {v(SQ)}, {v(SQ)}, {fl(1 / 512)}, {v(t + 1)}
        v_mul_f32 {v(t)}, {fl(1 / 512)}, {v(ACCS)}
        v_fma_f32 {v(SQ)}, -{v(t)}, {v(t)}, {v(SQ)}
        v_rsq_f32 {v(t)}, {v(SQ)}
        s_lshl_b32 s22, s3, 6
        s_add_u32 s22, s22, {STAT}
        v_lshl_add_u32 {v(t + 1)}, {v(VI)}, 2, s22
        ds_write_b32 {v(t + 1)}, {v(t)}
        v_mul_f32 {v(SQ)}, {v(SQ)}, {v(t)}
        v_lshl_add_u32 {v(t + 2)}, {v(VG)}, 4, s22
        ''')
        for r in range(16):
            k(f'v_fma_f32 {v(ACC + r)}, {v(ACC + 16 + r)}, {v(SGN)}, {v(ACC + r)}')
        k('s_waitcnt lgkmcnt(0)\ns_barrier')
        RS = ACC + 16
        for u in range(4):
            k(f'v_xor_b32 {v(t + 3)}, {64 * u}, {v(t + 2)}')
            k(f'ds_read_b128 {v(RS + 4 * u, 4)}, {v(t + 3)}')
        k.srd(48, 20, 2 * MB, Z_OFF)
        k.srd(52, 20, 2 * MB, WT_OFF)
        k(f'''
        s_lshl_b32 s22, s31, 6
        s_lshl_b32 s23, s3, 4
        s_add_u32 s22, s22, s23
        v_add_u32 {v(t + 4)}, s22, {v(VI)}
        v_lshlrev_b32 {v(t + 4)}, 12, {v(t + 4)}
        v_lshl_add_u32 {v(t + 4)}, {v(VG)}, 5, {v(t + 4)}
        s_lshl_b32 s23, s37, 7
        ''')
        for u in range(4):
            k(f's_waitcnt lgkmcnt({3 - u})')
            for r in range(4):
                k(f'v_mul_f32 {v(ACC + 4 * u + r)}, {v(ACC + 4 * u + r)}, {v(RS + 4 * u + r)}')
            k(f'v_cvt_pk_bf16_f32 {v(ACC + 4 * u)}, {v(ACC + 4 * u)}, {v(ACC + 4 * u + 1)}')
            k(f'v_cvt_pk_bf16_f32 {v(ACC + 4 * u + 1)}, {v(ACC + 4 * u + 2)}, {v(ACC + 4 * u + 3)}')
            k(f's_xor_b32 s22, s3, {u}\ns_lshl_b32 s22, s22, 3\ns_add_u32 s22, s22, s23')
            k(f'buffer_store_dwordx2 {v(ACC + 4 * u, 2)}, {v(t + 4)}, s[48:51], s22 offen')
        k('s_waitcnt vmcnt(4)')
        for r in range(8):
            k(f'v_lshl_or_b32 {v(WTR + r)}, {v(WTH + r)}, 16, {v(WTR + r)}')
        k(f'''
        buffer_store_dwordx4 {v(WTR, 4)}, {v(VT)}, s[52:55], s38 offen
        buffer_store_dwordx4 {v(WTR + 4, 4)}, {v(VT)}, s[52:55], s38 offen offset:16
        s_cmp_lg_u32 s31, 0
        s_cbranch_scc1 S0_END
        ''')
        k.srd(48, 20, 8192, STD_OFF)
        k(f'''
        v_lshrrev_b32 {v(t + 5)}, 2, {v(VI)}
        v_lshlrev_b32 {v(t + 5)}, 4, {v(t + 5)}
        v_and_b32 {v(t + 6)}, 3, {v(VI)}
        v_add_u32 {v(t + 5)}, {v(t + 5)}, {v(t + 6)}
        v_lshlrev_b32 {v(t + 5)}, 2, {v(t + 5)}
        s_lshl_b32 s22, s37, 8
        s_lshl_b32 s23, s3, 4
        s_add_u32 s22, s22, s23
        buffer_store_dword {v(SQ)}, {v(t + 5)}, s[48:51], s22 offen
        s_endpgm
        ''')
    else:
        k.srd(48, 20, 512 * 1024, WOP_OFF)
        k('''
        s_lshl_b32 s22, s37, 3
        s_add_u32 s22, s22, s31
        s_lshl_b32 s22, s22, 2
        s_add_u32 s22, s22, s3
        s_lshl_b32 s22, s22, 11
        ''')
        for r in range(16):
            k(f'v_fma_f32 {v(ACC + r)}, {v(ACC + 16 + r)}, {v(SGN)}, {v(ACC + r)}')
        for r in range(8):
            k(f'v_cvt_pk_bf16_f32 {v(ACC + 16 + r)}, {v(ACC + 2 * r)}, {v(ACC + 2 * r + 1)}')
        k(f'''
        buffer_store_dwordx4 {v(ACC + 16, 4)}, v4, s[48:51], s22 offen
        buffer_store_dwordx4 {v(ACC + 20, 4)}, v4, s[48:51], s22 offen offset:1024
        s_endpgm
        ''')

def s0_cols(k, isq):
    F = 8; ACC = 40; BUF = 72; T = 72; AD = 124; VT = 129; VT2 = 130
    NT = 4 if isq else 2
    NB = 8 if isq else 4
    if isq:
        k(f'''
        s_sub_u32 s22, s2, {N_MAIN + N_WO}
        s_lshr_b32 s31, s22, 3           ; f' block
        s_and_b32 s37, s22, 7            ; n block
        v_lshrrev_b32 {v(VT)}, 3, {v(VL)}      ; row
        v_lshrrev_b32 {v(VT2)}, 4, {v(VL)}     ; sigma
        v_lshlrev_b32 {v(VT2)}, 1, {v(VT2)}
        v_and_b32 v4, 7, {v(VL)}
        v_xor_b32 v4, v4, {v(VT2)}
        v_lshlrev_b32 v4, 4, v4
        v_lshl_add_u32 v4, {v(VT)}, 10, v4
        s_lshl_b32 s28, s37, 7
        s_lshl_b32 s22, s3, 13
        s_add_u32 s28, s28, s22
        s_lshl_b32 s32, s3, 10
        s_mov_b32 m0, s32
        s_waitcnt lgkmcnt(0)
        ''')
        k.srd(24, 12, 512 * 1024)
        for m in range(16):
            if m:
                k('s_add_u32 m0, m0, 4096\ns_add_u32 s28, s28, 32768')
            k('buffer_load_dwordx4 v4, s[24:27], s28 offen lds')
        rp = 128
    else:
        k(f'''
        s_sub_u32 s31, s2, {N_MAIN + N_WO + N_WQ}
        v_lshlrev_b32 v4, 4, {v(VL)}
        s_lshl_b32 s28, s3, 12
        s_mov_b32 m0, s28
        s_waitcnt lgkmcnt(0)
        ''')
        k.srd(24, 14, 16384)
        k.srd(40, 16, 16384)
        for m in range(4):
            k(f'buffer_load_dwordx4 v4, s[24:27], s28 offen offset:{1024 * m} lds')
        k('s_add_u32 m0, m0, 16384\ns_nop 0')
        for m in range(4):
            k(f'buffer_load_dwordx4 v4, s[40:43], s28 offen offset:{1024 * m} lds')
        rp = 32
    fgen(k, F, T, 4.0, 16, QSCALE if isq else 1.0, True)
    k(f'''
    v_lshrrev_b32 {v(VT)}, 2, {v(VL)}       ; 4g + r
    v_and_b32 {v(VT2)}, 3, {v(VL)}
    v_lshlrev_b32 {v(VT2)}, 3, {v(VT2)}
    v_mul_u32_u24 {v(AD)}, {rp}, {v(VT)}
    v_add_u32 {v(AD)}, {v(AD)}, {v(VT2)}
    ''')
    if isq:
        k(f'''
        v_lshrrev_b32 {v(VT)}, 1, {v(VT)}
        v_and_b32 {v(VT)}, 3, {v(VT)}
        v_lshl_add_u32 {v(AD)}, {v(VT)}, 5, {v(AD)}
        ''')
        for t in range(1, 4):
            k(f'v_xor_b32 {v(AD + t)}, {32 * t}, {v(AD)}')
    k('s_waitcnt vmcnt(0)\ns_barrier')
    reads = [(kk, t) for kk in range(16) for t in range(NT)]
    NBB = 7 if isq else 4
    def rd(n):
        kk, t = reads[n]
        b = BUF + 4 * (n % NBB)
        for hf in range(2):
            if isq:
                k(f'ds_read_b64_tr_b16 {v(b + 2 * hf, 2)}, {v(AD + t)} offset:{(32 * kk + 16 * hf) * rp}')
            else:
                k(f'ds_read_b64_tr_b16 {v(b + 2 * hf, 2)}, {v(AD)} offset:{(32 * kk + 16 * hf) * rp + 16384 * t}')
    for n in range(NBB): rd(n)
    for n, (kk, t) in enumerate(reads):
        out = min(NBB, len(reads) - n)
        k(f's_waitcnt lgkmcnt({2 * (out - 1)})')
        acc = ACC + 16 * (kk // 8) + 4 * t
        b = BUF + 4 * (n % NBB)
        k(f'v_mfma_f32_16x16x32_bf16 {v(acc, 4)}, {v(F + 4 * (kk % 8), 4)}, {v(b, 4)}, {"0" if kk % 8 == 0 else v(acc, 4)}')
        if n + NBB < len(reads): rd(n + NBB)
    k.srd(48, 20, WQ_SIZE, WQ_OFF)
    k(f'''
    v_lshlrev_b32 v4, 4, {v(VL)}
    s_lshl_b32 s22, s31, 1
    s_lshr_b32 s23, s3, 1
    s_add_u32 s22, s22, s23
    s_lshl_b32 s22, s22, 10
    s_and_b32 s23, s3, 1
    s_lshl_b32 s23, s23, 3
    s_add_u32 s22, s22, s23
    ''')
    if isq:
        k('s_lshl_b32 s23, s37, 16\ns_add_u32 s22, s22, s23')
    else:
        k(f's_add_u32 s22, s22, {32 * 16384}')
    for t in range(NT):
        for r in range(4):
            op = 'v_add_f32' if r < 2 else 'v_sub_f32'
            k(f'{op} {v(ACC + 4 * t + r)}, {v(ACC + 4 * t + r)}, {v(ACC + 16 + 4 * t + r)}')
        k(f'v_cvt_pk_bf16_f32 {v(ACC + 4 * t)}, {v(ACC + 4 * t)}, {v(ACC + 4 * t + 1)}')
        k(f'v_cvt_pk_bf16_f32 {v(ACC + 4 * t + 1)}, {v(ACC + 4 * t + 2)}, {v(ACC + 4 * t + 3)}')
        k(f'buffer_store_dwordx2 {v(ACC + 4 * t, 2)}, v4, s[48:51], s22 offen')
        if t + 1 < NT: k('s_add_u32 s22, s22, 16384')
    k('s_endpgm')

def s0_ft(k):
    base = N_MAIN + N_WO + N_WQ + N_KV
    D, FB, TT, OUT = 8, 9, 10, 20
    k(f'''
    s_sub_u32 s22, s2, {base}
    s_lshl_b32 s22, s22, 2
    s_add_u32 s22, s22, s3
    s_lshr_b32 s23, s22, 3
    s_lshl_b32 s23, s23, 4
    v_add_u32 {v(D)}, s23, {v(VI)}              ; d
    s_and_b32 s23, s22, 7
    s_lshl_b32 s23, s23, 5                      ; 16*kappa0
    v_lshl_add_u32 {v(FB)}, {v(VG)}, 1, s23     ; f base
    s_lshl_b32 s22, s22, 11
    s_add_u32 s22, s22, {34 * 16384}
    v_lshlrev_b32 v4, 4, {v(VL)}
    s_waitcnt lgkmcnt(0)
    ''')
    k.srd(48, 20, WQ_SIZE, WQ_OFF)
    for e in range(2):
        for q in range(4):
            off = 16 * e + 8 * (q // 2) + (q % 2)
            k(f'''
            v_add_u32 {v(TT)}, {off}, {v(FB)}
            v_mul_u32_u24 {v(TT)}, {v(TT)}, {v(D)}
            v_and_b32 {v(TT)}, 0x1ff, {v(TT)}
            v_cvt_f32_u32 {v(TT)}, {v(TT)}
            v_mul_f32 {v(TT)}, {fl(1 / 512)}, {v(TT)}
            v_cos_f32 {v(TT + 1)}, {v(TT)}
            v_sin_f32 {v(TT + 2)}, {v(TT)}
            v_mul_f32 {v(TT + 1)}, {fl(1 / 16)}, {v(TT + 1)}
            v_mul_f32 {v(TT + 2)}, {fl(-1 / 16)}, {v(TT + 2)}
            v_cvt_pk_bf16_f32 {v(OUT + 4 * e + q)}, {v(TT + 1)}, {v(TT + 2)}
            ''')
    bfv = BF16_RS512
    k(f'''
    v_lshlrev_b32 {v(TT)}, 31, {v(D)}
    v_or_b32 {v(TT)}, {bfv | (bfv << 16):#x}, {v(TT)}
    v_cmp_eq_u32 vcc, 0, {v(FB)}
    s_nop 1
    v_cndmask_b32 {v(OUT)}, {v(OUT)}, {v(TT)}, vcc
    buffer_store_dwordx4 {v(OUT, 4)}, v4, s[48:51], s22 offen
    buffer_store_dwordx4 {v(OUT + 4, 4)}, v4, s[48:51], s22 offen offset:1024
    s_endpgm
    ''')

def s0_wof(k):
    base = N_MAIN + N_WO + N_WQ + N_KV + N_FT
    R = 8
    k(f'''
    s_sub_u32 s22, s2, {base}
    s_lshl_b32 s22, s22, 2
    s_add_u32 s22, s22, s3
    s_lshr_b32 s23, s22, 4
    s_lshl_b32 s28, s23, 16             ; cb*64*1024
    s_and_b32 s23, s22, 1
    s_lshl_b32 s29, s23, 15
    s_add_u32 s28, s28, s29
    s_lshl_b32 s30, s23, 10
    s_lshr_b32 s23, s22, 1
    s_lshl_b32 s29, s23, 13
    s_add_u32 s30, s30, s29             ; (cb*8+wa)*8192
    s_and_b32 s23, s23, 7
    s_lshl_b32 s23, s23, 7
    s_add_u32 s28, s28, s23
    v_lshlrev_b32 v4, 1, {v(VL)}
    v_lshrrev_b32 v5, 2, {v(VL)}
    v_and_b32 v5, 3, v5
    v_lshlrev_b32 v5, 11, v5            ; n*2048
    v_and_b32 v6, 3, {v(VL)}
    v_lshl_add_u32 v6, {v(VG)}, 2, v6   ; i
    v_lshl_add_u32 v5, v6, 4, v5
    s_waitcnt lgkmcnt(0)
    ''')
    k.srd(24, 18, 512 * 1024)
    k.srd(48, 20, 512 * 1024, WOF_OFF)
    for g in range(4):
        for jj in range(2):
            for j in range(4):
                k(f'buffer_load_ushort {v(R + 16 * (j % 2) + 4 * g + 2 * jj + j // 2)}, v4, s[24:27], s28 offen offset:{1024 * j}')
            k('s_add_u32 s28, s28, 4096')
    for g in range(4):
        k(f's_waitcnt vmcnt({8 * (3 - g) + g})')
        for r in range(4):
            k(f'v_lshl_or_b32 {v(R + 4 * g + r)}, {v(R + 16 + 4 * g + r)}, 16, {v(R + 4 * g + r)}')
        k(f'buffer_store_dwordx4 {v(R + 4 * g, 4)}, v5, s[48:51], s30 offen offset:{256 * g}')
    k('s_endpgm')

def build():
    k = Kern('s0_kernel', S0_GRID, 256, S0_LDS, 140)
    k(f'''
    s_load_dwordx16 s[4:19], s[0:1], 0
    s_load_dwordx2 s[20:21], s[0:1], 80
    v_lshrrev_b32 v1, 6, v0
    v_and_b32 v0, 63, v0
    v_readfirstlane_b32 s3, v1
    v_and_b32 {v(VI)}, 15, v0
    v_lshrrev_b32 {v(VG)}, 4, v0
    s_cmp_ge_u32 s2, {N_MAIN}
    s_cbranch_scc1 S0_X
    ''')
    s0_rows(k, True)
    k.label('S0_X')
    k(f's_cmp_ge_u32 s2, {N_MAIN + N_WO}\ns_cbranch_scc1 S0_Y')
    s0_rows(k, False)
    k.label('S0_Y')
    k(f's_cmp_ge_u32 s2, {N_MAIN + N_WO + N_WQ}\ns_cbranch_scc1 S0_KV')
    s0_cols(k, True)
    k.label('S0_KV')
    k(f's_cmp_ge_u32 s2, {N_MAIN + N_WO + N_WQ + N_KV}\ns_cbranch_scc1 S0_FT')
    s0_cols(k, False)
    k.label('S0_FT')
    k(f's_cmp_ge_u32 s2, {N_MAIN + N_WO + N_WQ + N_KV + N_FT}\ns_cbranch_scc1 S0_WOF')
    s0_ft(k)
    k.label('S0_WOF')
    k(f's_cmp_ge_u32 s2, {S0_GRID}\ns_cbranch_scc1 S0_END')
    s0_wof(k)
    k.label('S0_END')
    k('s_endpgm')
    return k
```

```python
import math
MB = 1 << 20
Z_OFF = 0
XB_OFF = 2 * MB
QF_OFF = 4 * MB
X3_OFF = 6 * MB
WT_OFF = 8 * MB
WQ_OFF = 10 * MB
WQ_SIZE = 66 * 16384
WOP_OFF = 12 * MB
WOF_OFF = 12 * MB + 512 * 1024
KT_OFF = 13 * MB
VT_OFF = KT_OFF + 65536
STD_OFF = KT_OFF + 131072
WS_USED = STD_OFF + 8192
QSCALE = 0.25 * math.log2(math.e)
import struct
def _bf16(x):
    u = struct.unpack('<I', struct.pack('<f', x))[0]
    return (u + 0x7fff + ((u >> 16) & 1)) >> 16
BF16_RS512 = _bf16(1 / math.sqrt(512))
```

```python
import sys, importlib
sys.path.insert(0, 'gen')
from asmlib import *
NAME = 'interleave_layers__spectral_gfnet__grouped_kv_mqa__prompt'
def main(out, order):
    import k_s0
    ks = {'s0': k_s0.build}
    for mod, names in (('k_nop', ['nop']), ('k_c', ['c']), ('k_g', ['g1', 'g2']), ('k_a', ['a1', 'a2'])):
        try:
            m = importlib.import_module(mod)
        except ImportError as e:
            continue
        for n in names:
            ks[n] = (lambda m=m, n=n: m.build(n))
    built = {}
    for n in order:
        if n not in built: built[n] = ks[n]()
    ref = open(f'cdna_kernels/{NAME}.s.ref').read().split('\n')
    hdr = [l for l in ref if l.startswith(';') and '@launch' not in l and 'Override' not in l and 'grid=ceil' not in l]
    txt = '\n'.join(hdr) + '\n'
    for n in order:
        k = built[n]
        txt += f'; @launch kernel={k.name} grid=({k.grid},1,1) block=({k.block},1,1) lds={k.lds}\n'
    txt += '.amdgcn_target "amdgcn-amd-amdhsa--gfx950"\n.text\n'
    for k in built.values():
        txt += k.text()
        print(k.info)
    txt += '.section .rodata,"a"\n'
    for k in built.values():
        txt += k.desc()
    open(out, 'w').write(txt)
if __name__ == '__main__':
    order = sys.argv[2].split(',') if len(sys.argv) > 2 else ['s0', 'c', 'g1', 'a1', 'c', 'g2', 'a2']
    main(sys.argv[1] if len(sys.argv) > 1 else f'cdna_kernels/{NAME}.s', order)
```

```python
import re, struct

def v(n, c=1):
    return f'v{n}' if c == 1 else f'v[{n}:{n+c-1}]'
def a(n, c=1):
    return f'a{n}' if c == 1 else f'a[{n}:{n+c-1}]'
def s(n, c=1):
    return f's{n}' if c == 1 else f's[{n}:{n+c-1}]'
def fl(x):
    return '0x%08x' % struct.unpack('<I', struct.pack('<f', x))[0]

TRANS = {'v_exp_f32', 'v_log_f32', 'v_rcp_f32', 'v_rsq_f32', 'v_sqrt_f32', 'v_sin_f32', 'v_cos_f32'}
REG = re.compile(r'^(-|\|)?([vas])(?:\[(\d+):(\d+)\]|(\d+))\|?$')

def regs_of(tok):
    tok = tok.strip()
    if tok in ('vcc', 'exec'):
        return {tok + '_lo', tok + '_hi'}
    if tok in ('vcc_lo', 'vcc_hi', 'exec_lo', 'exec_hi', 'm0'):
        return {tok}
    m = REG.match(tok)
    if not m:
        return set()
    k = m.group(2)
    if m.group(5) is not None:
        return {k + m.group(5)}
    return {k + str(i) for i in range(int(m.group(3)), int(m.group(4)) + 1)}

class Ins:
    __slots__ = ('text', 'op', 'kind', 'w', 'r', 'A', 'B', 'C', 'D', 'passes', 'dpp', 'ws', 'label', 'target', 'wide', 'lds', 'data', 'opsel')
    def __init__(self, text):
        self.text = text
        t = text.split(';')[0].strip()
        self.label = None; self.target = None
        self.w = set(); self.r = set(); self.A = self.B = self.C = self.D = set()
        self.passes = 0; self.dpp = set(); self.ws = 1; self.wide = False; self.lds = False; self.data = set(); self.opsel = False
        if not t or t.startswith('.'):
            self.kind = 'none'; self.op = ''; self.ws = 0; return
        if t.endswith(':'):
            self.kind = 'label'; self.op = ''; self.label = t[:-1]; self.ws = 0; return
        parts = t.split(None, 1)
        op = parts[0]; self.op = op
        rest = parts[1] if len(parts) > 1 else ''
        ops = [o.strip() for o in rest.split(',')]
        mods = ''
        if ops and ' ' in ops[-1]:
            x = ops[-1].split(None, 1); ops[-1] = x[0]; mods = x[1]
        R = [regs_of(o) for o in ops]
        base = re.sub(r'_(e32|e64|dpp|sdwa)$', '', op)
        self.op = base
        if base.startswith('v_mfma'):
            self.kind = 'mfma'
            self.D, self.A, self.B, self.C = R[0], R[1], R[2], R[3]
            self.w = set(self.D); self.r = self.A | self.B | self.C
            self.passes = 8 if '32x32x16' in base else 4
        elif base.startswith('v_'):
            self.kind = 'valu'
            if base.startswith('v_permlane') or base.startswith('v_swap'):
                self.w = R[0] | R[1]; self.r = R[0] | R[1]
            elif base in ('v_add_co_u32', 'v_sub_co_u32', 'v_addc_co_u32', 'v_subb_co_u32', 'v_subrev_co_u32'):
                self.w = R[0] | R[1]
                for x in R[2:]: self.r |= x
            else:
                self.w = set(R[0])
                for x in R[1:]: self.r |= x
                if base.startswith(('v_fmac', 'v_mac', 'v_dot2c', 'v_pk_fmac')) or 'row_' in mods or 'quad_perm' in mods:
                    self.r |= R[0]
                if base.startswith('v_cmpx'):
                    self.w |= {'exec_lo', 'exec_hi'}
            if 'row_' in mods or 'quad_perm' in mods or 'wave_' in mods:
                self.dpp = set(R[1])
            if 'op_sel' in mods and not base.startswith('v_pk') and not base.startswith('v_dot'):
                self.opsel = True
            if 'dst_sel' in mods: self.opsel = True
        elif base.startswith('ds_'):
            self.kind = 'ds'
            if base.startswith(('ds_read', 'ds_bpermute', 'ds_permute', 'ds_swizzle')) or '_rtn' in base:
                self.w = set(R[0])
                for x in R[1:]: self.r |= x
            else:
                for x in R: self.r |= x
        elif base.startswith(('buffer_', 'global_', 'flat_')):
            self.kind = 'vmem'
            islds = ' lds' in (' ' + mods) or 'load_lds' in base
            self.lds = islds
            if 'load' in base and not islds:
                self.w = set(R[0])
                for x in R[1:]: self.r |= x
                if 'd16' in base: self.r |= R[0]
            else:
                for x in R: self.r |= x
                if 'store' in base and ('x3' in base or 'x4' in base):
                    self.wide = True
                    self.data = R[0] if base.startswith('buffer') else R[1]
            if islds: self.r |= {'m0'}
        elif base.startswith('s_'):
            self.kind = 'salu'
            if base == 's_nop':
                self.ws = int(ops[0], 0) + 1
            elif base.startswith(('s_cbranch', 's_branch')):
                self.target = ops[0]
            elif base.startswith(('s_cmp', 's_waitcnt', 's_barrier', 's_endpgm', 's_setprio', 's_sleep', 's_bitcmp')):
                for x in R: self.r |= x
            else:
                self.w = set(R[0])
                for x in R[1:]: self.r |= x
                if 'saveexec' in base: self.w |= {'exec_lo', 'exec_hi'}
        else:
            raise ValueError('unknown op ' + text)

def isv(r): return r[0] in 'va' and r[1:].isdigit()
def vg(st): return {r for r in st if isv(r)}
def sg(st): return {r for r in st if not isv(r)}

def need(p, c):
    n = 0
    if p.kind == 'valu':
        pw = vg(p.w); ps = sg(p.w)
        isdot = p.op.startswith('v_dot')
        if c.kind == 'mfma' and pw & c.r: n = max(n, 3 if isdot else 2)
        if c.kind == 'valu':
            if p.op in TRANS and c.op not in TRANS and pw & c.r: n = max(n, 1)
            if p.op in TRANS and c.op in TRANS and pw & c.r: n = max(n, 1)
            if pw & c.dpp: n = max(n, 2)
            if c.op.startswith('v_permlane') and pw & c.r: n = max(n, 2)
            if c.op.startswith(('v_readlane', 'v_readfirstlane')) and pw & c.r: n = max(n, 1)
            rd = set(c.r)
            if c.op.startswith('v_cndmask') and not sg(c.r): rd |= {'vcc_lo', 'vcc_hi'}
            if c.op in ('v_addc_co_u32', 'v_subb_co_u32'): rd |= {'vcc_lo', 'vcc_hi'}
            if ps & rd: n = max(n, 4 if c.op.startswith(('v_readlane', 'v_writelane')) else 2)
            if p.opsel and pw & (c.r | c.w): n = max(n, 1)
            if isdot and pw & (c.r | c.w):
                if c.op == p.op:
                    ops = [o.strip() for o in c.text.split(';')[0].split(None, 1)[1].split(',')]
                    ab = regs_of(ops[1].split()[0]) | regs_of(ops[2].split()[0])
                    if pw & ab: n = max(n, 3)
                else:
                    n = max(n, 3)
            if 'exec_lo' in ps and (c.dpp or c.op.startswith(('v_permlane', 'v_readlane', 'v_readfirstlane'))): n = max(n, 5)
        if c.kind in ('vmem', 'ds'):
            if ps & c.r: n = max(n, 5)
            if isdot and pw & c.r: n = max(n, 3)
            if p.op in TRANS and pw & c.r: n = max(n, 1)
        if c.kind == 'mfma' and 'exec_lo' in ps: n = max(n, 4)
    elif p.kind == 'mfma':
        big = 12 if p.passes == 8 else 8
        if c.kind == 'mfma':
            if p.D & c.C:
                if not (p.D == c.C and p.passes == c.passes): n = max(n, big - 2)
            if p.D & (c.A | c.B): n = max(n, big)
            if p.D & c.D and not (p.D == c.C): n = max(n, big)
        elif c.kind in ('valu', 'vmem', 'ds'):
            if p.D & (c.r | c.w): n = max(n, big)
            if c.kind == 'valu' and p.C & c.w: n = max(n, 7 if p.passes == 8 else 3)
            if c.kind in ('vmem', 'ds') and p.C & c.w: n = max(n, 7 if p.passes == 8 else 3)
    elif p.kind == 'salu':
        if 'm0' in p.w and (c.lds or 'addtid' in c.op): n = max(n, 1)
    elif p.kind == 'vmem':
        if p.wide and c.kind in ('valu', 'mfma') and p.data & c.w: n = max(n, 2)
        if p.wide and c.kind in ('vmem', 'ds') and p.data & c.w: n = max(n, 1)
    return n

def fix_hazards(lines, name=''):
    ins = [Ins(l) for l in lines]
    out = []
    nfix = 0
    def back(seq, c):
        d = 0; miss = 0
        for p in reversed(seq):
            if d >= 14: break
            if p.kind in ('none', 'label'): continue
            if p.op in ('s_branch', 's_endpgm'): break
            n = need(p, c)
            if n - d > miss: miss = n - d
            d += p.ws
        return miss
    for c in ins:
        if c.kind not in ('none', 'label'):
            m = back(out[-40:], c)
            if m > 0:
                out.append(Ins(f'    s_nop {m-1}'))
                nfix += m
        out.append(c)
    lab = {i.label: k for k, i in enumerate(out) if i.kind == 'label'}
    for k, b in enumerate(out):
        if b.target is not None:
            pre = out[max(0, k - 40):k] + [Ins('s_nop 0')]
            t = lab[b.target]
            seq = list(pre)
            cnt = 0
            for c in out[t:t + 40]:
                if c.kind in ('none', 'label'): continue
                m = back(seq, c)
                if m > 0:
                    raise RuntimeError(f'{name}: hazard across branch {b.text.strip()} -> {c.text.strip()} missing {m}')
                seq.append(c); cnt += c.ws
                if cnt > 14 or c.op in ('s_branch', 's_endpgm'): break
    return [i.text for i in out], nfix

class Kern:
    def __init__(self, name, grid, block, lds, vgpr, sgpr=96, agpr=0):
        self.name = name; self.grid = grid; self.block = block; self.lds = lds
        self.vgpr = vgpr; self.sgpr = sgpr; self.agpr = agpr
        self.lines = []
    def __call__(self, txt):
        for l in txt.split('\n'):
            l = l.strip()
            if not l: continue
            self.lines.append(l if l.endswith(':') and ' ' not in l else '    ' + l)
    def label(self, n):
        self.lines.append(f'{n}:')
    def srd(self, d, blo, size, off=0):
        if off:
            self(f's_add_u32 s{d}, s{blo}, {hex(off)}\ns_addc_u32 s{d+1}, s{blo+1}, 0')
        elif d != blo:
            self(f's_mov_b32 s{d}, s{blo}\ns_mov_b32 s{d+1}, s{blo+1}')
        self(f's_mov_b32 s{d+2}, {hex(size)}\ns_mov_b32 s{d+3}, 0x20000')
    def stamp(self):
        import os
        if not os.environ.get('PROF'): return
        n = getattr(self, 'nst', 0); self.nst = n + 1
        assert n < 20
        self(f's_memtime s[{52 + 2 * n}:{53 + 2 * n}]')
    def dump(self, slot, vt):
        import os
        if not os.environ.get('PROF'): return
        self.stamp()
        self('s_mov_b64 exec, 1\ns_waitcnt lgkmcnt(0) vmcnt(0)')
        self.srd(44, 20, 1 << 19, 14 * (1 << 20) + slot * (1 << 19) // 2)
        self(f's_lshl_b32 s48, s2, 3\ns_add_u32 s48, s48, s3\ns_lshl_b32 s48, s48, 7\nv_mov_b32 v{vt}, 0')
        for n in range(self.nst):
            self(f'v_mov_b32 v{vt + 1}, s{52 + 2 * n}\nbuffer_store_dword v{vt + 1}, v{vt}, s[44:47], s48 offen offset:{4 * n}')
        self.nst -= 1
    def text(self):
        body, nf = fix_hazards(self.lines, self.name)
        mx = 0
        for l in body:
            for m in re.finditer(r'\bv\[?(\d+)(?::(\d+))?', l.split(';')[0]):
                mx = max(mx, int(m.group(2) or m.group(1)))
        assert mx < self.vgpr, (self.name, mx, self.vgpr)
        self.info = f'{self.name}: {len(body)} lines, {nf} nop states inserted, max v{mx}'
        return f'.globl {self.name}\n.p2align 8\n.type {self.name},@function\n{self.name}:\n' + '\n'.join(body) + '\n'
    def desc(self):
        acc = (self.vgpr + 3) // 4 * 4
        return f'''.p2align 6
.amdhsa_kernel {self.name}
  .amdhsa_next_free_vgpr {acc + self.agpr}
  .amdhsa_next_free_sgpr {self.sgpr}
  .amdhsa_accum_offset {acc}
  .amdhsa_group_segment_fixed_size 0
  .amdhsa_kernarg_size 88
  .amdhsa_user_sgpr_count 2
  .amdhsa_user_sgpr_kernarg_segment_ptr 1
  .amdhsa_system_sgpr_workgroup_id_x 1
.end_amdhsa_kernel
'''
```

```python
import re, struct

def v(n, c=1):
    return f'v{n}' if c == 1 else f'v[{n}:{n+c-1}]'
def a(n, c=1):
    return f'a{n}' if c == 1 else f'a[{n}:{n+c-1}]'
def s(n, c=1):
    return f's{n}' if c == 1 else f's[{n}:{n+c-1}]'
def fl(x):
    return '0x%08x' % struct.unpack('<I', struct.pack('<f', x))[0]

TRANS = {'v_exp_f32', 'v_log_f32', 'v_rcp_f32', 'v_rsq_f32', 'v_sqrt_f32', 'v_sin_f32', 'v_cos_f32'}
REG = re.compile(r'^(-|\|)?([vas])(?:\[(\d+):(\d+)\]|(\d+))\|?$')

def regs_of(tok):
    tok = tok.strip()
    if tok in ('vcc', 'exec'):
        return {tok + '_lo', tok + '_hi'}
    if tok in ('vcc_lo', 'vcc_hi', 'exec_lo', 'exec_hi', 'm0'):
        return {tok}
    m = REG.match(tok)
    if not m:
        return set()
    k = m.group(2)
    if m.group(5) is not None:
        return {k + m.group(5)}
    return {k + str(i) for i in range(int(m.group(3)), int(m.group(4)) + 1)}

class Ins:
    __slots__ = ('text', 'op', 'kind', 'w', 'r', 'A', 'B', 'C', 'D', 'passes', 'dpp', 'ws', 'label', 'target', 'wide', 'lds', 'data', 'opsel')
    def __init__(self, text):
        self.text = text
        t = text.split(';')[0].strip()
        self.label = None; self.target = None
        self.w = set(); self.r = set(); self.A = self.B = self.C = self.D = set()
        self.passes = 0; self.dpp = set(); self.ws = 1; self.wide = False; self.lds = False; self.data = set(); self.opsel = False
        if not t or t.startswith('.'):
            self.kind = 'none'; self.op = ''; self.ws = 0; return
        if t.endswith(':'):
            self.kind = 'label'; self.op = ''; self.label = t[:-1]; self.ws = 0; return
        parts = t.split(None, 1)
        op = parts[0]; self.op = op
        rest = parts[1] if len(parts) > 1 else ''
        ops = [o.strip() for o in rest.split(',')]
        mods = ''
        if ops and ' ' in ops[-1]:
            x = ops[-1].split(None, 1); ops[-1] = x[0]; mods = x[1]
        R = [regs_of(o) for o in ops]
        base = re.sub(r'_(e32|e64|dpp|sdwa)$', '', op)
        self.op = base
        if base.startswith('v_mfma'):
            self.kind = 'mfma'
            self.D, self.A, self.B, self.C = R[0], R[1], R[2], R[3]
            self.w = set(self.D); self.r = self.A | self.B | self.C
            self.passes = 8 if '32x32x16' in base else 4
        elif base.startswith('v_'):
            self.kind = 'valu'
            if base.startswith('v_permlane') or base.startswith('v_swap'):
                self.w = R[0] | R[1]; self.r = R[0] | R[1]
            elif base in ('v_add_co_u32', 'v_sub_co_u32', 'v_addc_co_u32', 'v_subb_co_u32', 'v_subrev_co_u32'):
                self.w = R[0] | R[1]
                for x in R[2:]: self.r |= x
            else:
                self.w = set(R[0])
                for x in R[1:]: self.r |= x
                if base.startswith(('v_fmac', 'v_mac', 'v_dot2c', 'v_pk_fmac')) or 'row_' in mods or 'quad_perm' in mods:
                    self.r |= R[0]
                if base.startswith('v_cmpx'):
                    self.w |= {'exec_lo', 'exec_hi'}
            if 'row_' in mods or 'quad_perm' in mods or 'wave_' in mods:
                self.dpp = set(R[1])
            if 'op_sel' in mods and not base.startswith('v_pk') and not base.startswith('v_dot'):
                self.opsel = True
            if 'dst_sel' in mods: self.opsel = True
        elif base.startswith('ds_'):
            self.kind = 'ds'
            if base.startswith(('ds_read', 'ds_bpermute', 'ds_permute', 'ds_swizzle')) or '_rtn' in base:
                self.w = set(R[0])
                for x in R[1:]: self.r |= x
            else:
                for x in R: self.r |= x
        elif base.startswith(('buffer_', 'global_', 'flat_')):
            self.kind = 'vmem'
            islds = ' lds' in (' ' + mods) or 'load_lds' in base
            self.lds = islds
            if 'load' in base and not islds:
                self.w = set(R[0])
                for x in R[1:]: self.r |= x
                if 'd16' in base: self.r |= R[0]
            else:
                for x in R: self.r |= x
                if 'store' in base and ('x3' in base or 'x4' in base):
                    self.wide = True
                    self.data = R[0] if base.startswith('buffer') else R[1]
            if islds: self.r |= {'m0'}
        elif base.startswith('s_'):
            self.kind = 'salu'
            if base == 's_nop':
                self.ws = int(ops[0], 0) + 1
            elif base.startswith(('s_cbranch', 's_branch')):
                self.target = ops[0]
            elif base.startswith(('s_cmp', 's_waitcnt', 's_barrier', 's_endpgm', 's_setprio', 's_sleep', 's_bitcmp')):
                for x in R: self.r |= x
            else:
                self.w = set(R[0])
                for x in R[1:]: self.r |= x
                if 'saveexec' in base: self.w |= {'exec_lo', 'exec_hi'}
        else:
            raise ValueError('unknown op ' + text)

def isv(r): return r[0] in 'va' and r[1:].isdigit()
def vg(st): return {r for r in st if isv(r)}
def sg(st): return {r for r in st if not isv(r)}

def need(p, c):
    n = 0
    if p.kind == 'valu':
        pw = vg(p.w); ps = sg(p.w)
        isdot = p.op.startswith('v_dot')
        if c.kind == 'mfma' and pw & c.r: n = max(n, 3 if isdot else 2)
        if c.kind == 'valu':
            if p.op in TRANS and c.op not in TRANS and pw & c.r: n = max(n, 1)
            if p.op in TRANS and c.op in TRANS and pw & c.r: n = max(n, 1)
            if pw & c.dpp: n = max(n, 2)
            if c.op.startswith('v_permlane') and pw & c.r: n = max(n, 2)
            if c.op.startswith(('v_readlane', 'v_readfirstlane')) and pw & c.r: n = max(n, 1)
            rd = set(c.r)
            if c.op.startswith('v_cndmask') and not sg(c.r): rd |= {'vcc_lo', 'vcc_hi'}
            if c.op in ('v_addc_co_u32', 'v_subb_co_u32'): rd |= {'vcc_lo', 'vcc_hi'}
            if ps & rd: n = max(n, 4 if c.op.startswith(('v_readlane', 'v_writelane')) else 2)
            if p.opsel and pw & (c.r | c.w): n = max(n, 1)
            if isdot and pw & (c.r | c.w):
                if c.op == p.op:
                    ops = [o.strip() for o in c.text.split(';')[0].split(None, 1)[1].split(',')]
                    ab = regs_of(ops[1].split()[0]) | regs_of(ops[2].split()[0])
                    if pw & ab: n = max(n, 3)
                else:
                    n = max(n, 3)
            if 'exec_lo' in ps and (c.dpp or c.op.startswith(('v_permlane', 'v_readlane', 'v_readfirstlane'))): n = max(n, 5)
        if c.kind in ('vmem', 'ds'):
            if ps & c.r: n = max(n, 5)
            if isdot and pw & c.r: n = max(n, 3)
            if p.op in TRANS and pw & c.r: n = max(n, 1)
        if c.kind == 'mfma' and 'exec_lo' in ps: n = max(n, 4)
    elif p.kind == 'mfma':
        big = 12 if p.passes == 8 else 8
        if c.kind == 'mfma':
            if p.D & c.C:
                if not (p.D == c.C and p.passes == c.passes): n = max(n, big - 2)
            if p.D & (c.A | c.B): n = max(n, big)
            if p.D & c.D and not (p.D == c.C): n = max(n, big)
        elif c.kind in ('valu', 'vmem', 'ds'):
            if p.D & (c.r | c.w): n = max(n, big)
            if c.kind == 'valu' and p.C & c.w: n = max(n, 7 if p.passes == 8 else 3)
            if c.kind in ('vmem', 'ds') and p.C & c.w: n = max(n, 7 if p.passes == 8 else 3)
    elif p.kind == 'salu':
        if 'm0' in p.w and (c.lds or 'addtid' in c.op): n = max(n, 1)
    elif p.kind == 'vmem':
        if p.wide and c.kind in ('valu', 'mfma') and p.data & c.w: n = max(n, 2)
        if p.wide and c.kind in ('vmem', 'ds') and p.data & c.w: n = max(n, 1)
    return n

def fix_hazards(lines, name=''):
    ins = [Ins(l) for l in lines]
    out = []
    nfix = 0
    def back(seq, c):
        d = 0; miss = 0
        for p in reversed(seq):
            if d >= 14: break
            if p.kind in ('none', 'label'): continue
            if p.op in ('s_branch', 's_endpgm'): break
            n = need(p, c)
            if n - d > miss: miss = n - d
            d += p.ws
        return miss
    for c in ins:
        if c.kind not in ('none', 'label'):
            m = back(out[-40:], c)
            if m > 0:
                out.append(Ins(f'    s_nop {m-1}'))
                nfix += m
        out.append(c)
    lab = {i.label: k for k, i in enumerate(out) if i.kind == 'label'}
    for k, b in enumerate(out):
        if b.target is not None:
            pre = out[max(0, k - 40):k] + [Ins('s_nop 0')]
            t = lab[b.target]
            seq = list(pre)
            cnt = 0
            for c in out[t:t + 40]:
                if c.kind in ('none', 'label'): continue
                m = back(seq, c)
                if m > 0:
                    raise RuntimeError(f'{name}: hazard across branch {b.text.strip()} -> {c.text.strip()} missing {m}')
                seq.append(c); cnt += c.ws
                if cnt > 14 or c.op in ('s_branch', 's_endpgm'): break
    return [i.text for i in out], nfix

class Kern:
    def __init__(self, name, grid, block, lds, vgpr, sgpr=96, agpr=0):
        self.name = name; self.grid = grid; self.block = block; self.lds = lds
        self.vgpr = vgpr; self.sgpr = sgpr; self.agpr = agpr
        self.lines = []
    def __call__(self, txt):
        for l in txt.split('\n'):
            l = l.strip()
            if not l: continue
            self.lines.append(l if l.endswith(':') and ' ' not in l else '    ' + l)
    def label(self, n):
        self.lines.append(f'{n}:')
    def srd(self, d, blo, size, off=0):
        if off:
            self(f's_add_u32 s{d}, s{blo}, {hex(off)}\ns_addc_u32 s{d+1}, s{blo+1}, 0')
        elif d != blo:
            self(f's_mov_b32 s{d}, s{blo}\ns_mov_b32 s{d+1}, s{blo+1}')
        self(f's_mov_b32 s{d+2}, {hex(size)}\ns_mov_b32 s{d+3}, 0x20000')
    def stamp(self):
        import os
        if not os.environ.get('PROF'): return
        n = getattr(self, 'nst', 0); self.nst = n + 1
        assert n < 18
        if n == 0: self('s_memrealtime s[56:57]')
        self(f's_memtime s[{60 + 2 * n}:{61 + 2 * n}]')
    def dump(self, slot, vt, keep=True):
        import os
        if not os.environ.get('PROF'): return
        self('s_waitcnt vmcnt(0)')
        self.stamp()
        self('s_memrealtime s[58:59]')
        self('s_load_dwordx2 s[48:49], s[0:1], 72')
        self('s_mov_b64 exec, 1\ns_waitcnt lgkmcnt(0) vmcnt(0)')
        self.srd(44, 48, 1 << 19)
        self(f's_lshl_b32 s48, s2, 3\ns_add_u32 s48, s48, s3\ns_lshl_b32 s48, s48, 7\nv_mov_b32 v{vt}, 0')
        self(f'v_mov_b32 v{vt + 1}, s56\nbuffer_store_dword v{vt + 1}, v{vt}, s[44:47], s48 offen offset:120')
        self(f'v_mov_b32 v{vt + 1}, s58\nbuffer_store_dword v{vt + 1}, v{vt}, s[44:47], s48 offen offset:124')
        self(f'v_mov_b32 v{vt + 1}, {slot}\nbuffer_store_dword v{vt + 1}, v{vt}, s[44:47], s48 offen offset:116')
        for n in range(self.nst):
            self(f'v_mov_b32 v{vt + 1}, s{60 + 2 * n}\nbuffer_store_dword v{vt + 1}, v{vt}, s[44:47], s48 offen offset:{4 * n}')
        self.nst -= 1
    def setstamp(self, n):
        self.nst = n
    def text(self):
        body, nf = fix_hazards(self.lines, self.name)
        mx = 0
        for l in body:
            for m in re.finditer(r'\bv\[?(\d+)(?::(\d+))?', l.split(';')[0]):
                mx = max(mx, int(m.group(2) or m.group(1)))
        assert mx < self.vgpr, (self.name, mx, self.vgpr)
        self.info = f'{self.name}: {len(body)} lines, {nf} nop states inserted, max v{mx}'
        return f'.globl {self.name}\n.p2align 8\n.type {self.name},@function\n{self.name}:\n' + '\n'.join(body) + '\n'
    def desc(self):
        acc = (self.vgpr + 3) // 4 * 4
        return f'''.p2align 6
.amdhsa_kernel {self.name}
  .amdhsa_next_free_vgpr {acc + self.agpr}
  .amdhsa_next_free_sgpr {self.sgpr}
  .amdhsa_accum_offset {acc}
  .amdhsa_group_segment_fixed_size 0
  .amdhsa_kernarg_size 88
  .amdhsa_user_sgpr_count 2
  .amdhsa_user_sgpr_kernarg_segment_ptr 1
  .amdhsa_system_sgpr_workgroup_id_x 1
.end_amdhsa_kernel
'''
```

```python
from asmlib import *
from layout import *
import math

PITCH = 1056
STAT = 64 * PITCH
S0_LDS = STAT + 256
N_MAIN, N_WO, N_WQ, N_KV, N_FT, N_WOF = 256, 64, 64, 8, 64, 32
S0_GRID = N_MAIN + N_WO + N_WQ + N_KV + N_FT + N_WOF

VL, VI, VG = 0, 2, 3

def fgen(k, F, T, alpha, beta, scale, zero_dc, vsgn=None):
    fp, f, ph, amp, w, a0 = T + 24, T + 25, T + 26, T + 27, T + 28, T + 29
    C = [T, T + 8, T + 16]
    k(f'''
    s_lshl_b32 s22, s31, 6
    s_lshl_b32 s23, s3, 4
    s_add_u32 s22, s22, s23
    v_add_u32 {v(fp)}, s22, {v(VI)}
    v_lshrrev_b32 {v(f)}, 1, {v(fp)}
    v_and_b32 {v(ph)}, 1, {v(fp)}
    v_cvt_f32_u32 {v(ph)}, {v(ph)}
    v_mul_f32 {v(ph)}, 0.25, {v(ph)}
    v_mov_b32 {v(w)}, 0x100
    v_cmp_eq_u32 vcc, 1, {v(fp)}
    v_mov_b32 {v(amp)}, {fl(scale / 16)}
    v_mov_b32 {v(a0)}, {fl(scale / math.sqrt(512))}
    v_cndmask_b32 {v(f)}, {v(f)}, {v(w)}, vcc
    v_cndmask_b32 {v(ph)}, {v(ph)}, 0, vcc
    v_cmp_gt_u32 vcc, 2, {v(fp)}
    v_cvt_f32_u32 {v(w)}, {v(f)}
    v_mul_f32 {v(w)}, {fl(1 / 512)}, {v(w)}
    v_cndmask_b32 {v(amp)}, {v(amp)}, {v(a0)}, vcc
    ''')
    if zero_dc:
        k(f'''
        v_cmp_eq_u32 vcc, 0, {v(fp)}
        s_nop 1
        v_cndmask_b32 {v(amp)}, {v(amp)}, 0, vcc
        ''')
    if vsgn is not None:
        k(f'''
        v_lshlrev_b32 {v(vsgn)}, 31, {v(f)}
        v_or_b32 {v(vsgn)}, 1.0, {v(vsgn)}
        ''')
    k(f'''
    v_cvt_f32_u32 {v(a0)}, {v(VG)}
    v_mul_f32 {v(a0)}, {fl(alpha)}, {v(a0)}
    v_fma_f32 {v(a0)}, {v(a0)}, {v(w)}, {v(ph)}
    ''')
    for kk in range(2):
        for j in range(8):
            d = 32 * kk + (j % 4) + beta * (j // 4)
            k(f'v_fmamk_f32 {v(C[kk] + j)}, {v(w)}, {fl(d)}, {v(a0)}')
        for j in range(8):
            k(f'v_fract_f32 {v(C[kk] + j)}, {v(C[kk] + j)}')
        for j in range(8):
            k(f'v_cos_f32 {v(C[kk] + j)}, {v(C[kk] + j)}')
        for j in range(8):
            k(f'v_mul_f32 {v(C[kk] + j)}, {v(amp)}, {v(C[kk] + j)}')
        for j in range(4):
            k(f'v_cvt_pk_bf16_f32 {v(F + 4 * kk + j)}, {v(C[kk] + 2 * j)}, {v(C[kk] + 2 * j + 1)}')
    m = ph
    k(f'''
    v_mul_f32 {v(m)}, {fl(32.0)}, {v(w)}
    v_fract_f32 {v(m)}, {v(m)}
    v_cos_f32 {v(m)}, {v(m)}
    s_nop 0
    v_add_f32 {v(m)}, {v(m)}, {v(m)}
    ''')
    for kk in range(2, 8):
        c0, c1, c2 = C[kk % 3], C[(kk - 1) % 3], C[(kk - 2) % 3]
        for j in range(8):
            k(f'v_fma_f32 {v(c0 + j)}, {v(m)}, {v(c1 + j)}, -{v(c2 + j)}')
        for j in range(4):
            k(f'v_cvt_pk_bf16_f32 {v(F + 4 * kk + j)}, {v(c0 + 2 * j)}, {v(c0 + 2 * j + 1)}')

def s0_rows(k, main):
    F = 8; ACC = 40; BUF = 72; T = 72
    ONES = 104; ACCS = 108; SQ = 112; WTR = 116; AD = 124; SGN = 128; VT = 129; VT2 = 130; VT3 = 131; WTH = 132
    NB = 8
    if main:
        k('''
        s_and_b32 s22, s2, 7
        s_lshl_b32 s22, s22, 2
        s_lshr_b32 s23, s2, 3
        s_and_b32 s23, s23, 3
        s_add_u32 s37, s22, s23          ; rb
        s_lshr_b32 s31, s2, 5            ; cb
        s_lshr_b32 s22, s37, 4
        s_lshl_b32 s28, s22, 10          ; 1024*kappa
        s_lshr_b32 s22, s37, 1
        s_and_b32 s22, s22, 3
        s_lshl_b32 s22, s22, 8
        s_add_u32 s28, s28, s22          ; +256 gg
        s_and_b32 s22, s37, 8
        s_lshl_b32 s22, s22, 1
        s_add_u32 s28, s28, s22          ; +16 t
        s_and_b32 s22, s37, 1
        s_lshl_b32 s22, s22, 3
        s_add_u32 s28, s28, s22          ; +8 i3
        s_and_b32 s22, s3, 1
        s_lshl_b32 s22, s22, 7
        s_add_u32 s28, s28, s22
        s_lshr_b32 s22, s3, 1
        s_add_u32 s28, s28, s22
        s_lshl_b32 s28, s28, 10
        ''')
        A_, B_ = 32768, 2048
        k('s_waitcnt lgkmcnt(0)')
        k.srd(24, 4, 2 * MB)
    else:
        k('''
        s_sub_u32 s22, s2, 256
        s_lshr_b32 s37, s22, 3
        s_and_b32 s31, s22, 7            ; cb
        s_lshl_b32 s28, s37, 6
        s_lshr_b32 s22, s3, 1
        s_lshl_b32 s22, s22, 5
        s_add_u32 s28, s28, s22
        s_and_b32 s22, s3, 1
        s_lshl_b32 s22, s22, 2
        s_add_u32 s28, s28, s22
        s_lshl_b32 s28, s28, 10
        ''')
        A_, B_ = 1024, 8192
        k('s_waitcnt lgkmcnt(0)')
        k.srd(24, 18, 512 * 1024)
    k(f'''
    v_lshlrev_b32 v4, 4, {v(VL)}
    s_mul_i32 s32, s3, {16 * PITCH}
    s_mov_b32 m0, s32
    ''')
    for m in range(16):
        if m:
            k(f's_add_u32 m0, m0, {PITCH}')
            d = A_ if m % 4 else B_ - 3 * A_
            k(f's_add_u32 s28, s28, {d & 0xffffffff:#x}')
        else:
            k('s_nop 0')
        k('buffer_load_dwordx4 v4, s[24:27], s28 offen lds')
    if main:
        k.srd(40, 6, 2048 * 514 + 4)
        k.srd(44, 8, 2048 * 514 + 4)
        k(f'''
        s_and_b32 s22, s2, 3
        s_lshl_b32 s22, s22, 6
        v_add_u32 {v(VT)}, s22, {v(VL)}          ; f
        v_mov_b32 {v(VT2)}, 0x100
        v_cmp_eq_u32 vcc, 0, {v(VT)}
        s_lshr_b32 s22, s2, 2
        s_and_b32 s23, s22, 7                 ; k1b
        v_cndmask_b32 {v(VT2)}, {v(VT)}, {v(VT2)}, vcc
        v_lshlrev_b32 {v(VT2)}, 1, {v(VT2)}
        v_lshlrev_b32 {v(VT)}, 13, {v(VT)}
        s_lshr_b32 s22, s22, 3                ; k2b
        s_lshl_b32 s23, s23, 3
        s_lshl_b32 s33, s3, 1
        s_add_u32 s23, s23, s33               ; k1 (e=0)
        s_lshl_b32 s33, s22, 8
        s_add_u32 s33, s33, s23
        s_mul_i32 s33, s33, 514
        ''')
        for r in range(4):
            if r: k(f's_add_u32 s33, s33, {64 * 514}')
            for e in range(2):
                k(f'buffer_load_ushort {v(WTR + 4 * e + r)}, {v(VT2)}, s[40:43], s33 offen offset:{514 * e}')
                k(f'buffer_load_ushort {v(WTH + 4 * e + r)}, {v(VT2)}, s[44:47], s33 offen offset:{514 * e}')
        k('''
        s_lshr_b32 s33, s23, 4
        s_lshl_b32 s33, s33, 11
        s_and_b32 s23, s23, 15
        s_lshl_b32 s23, s23, 4
        s_add_u32 s33, s33, s23
        s_lshl_b32 s22, s22, 8
        s_add_u32 s38, s33, s22
        ''')
    k.setstamp(1); k.stamp()
    fgen(k, F, T, 8.0, 4, 1.0, False, SGN)
    k.stamp()
    k(f'''
    v_mul_u32_u24 {v(VT3)}, {PITCH}, {v(VI)}
    v_lshl_add_u32 {v(VT3)}, {v(VG)}, 4, {v(VT3)}
    ''')
    if main:
        for u in range(4):
            k(f's_xor_b32 s22, s3, {u}\ns_mul_i32 s22, s22, {16 * PITCH}\nv_add_u32 {v(AD + u)}, s22, {v(VT3)}')
        for j in range(4):
            k(f'v_mov_b32 {v(ONES + j)}, 0x3f803f80\nv_mov_b32 {v(SQ + j)}, 0')
        k('s_waitcnt vmcnt(16)')
    else:
        k('s_waitcnt vmcnt(0)')
    k.stamp()
    k('s_barrier')
    k.stamp()
    reads = [(kk, u) for kk in range(16) for u in range(4)]
    def rd(n):
        kk, u = reads[n]
        if main:
            k(f'ds_read_b128 {v(BUF + 4 * (n % NB), 4)}, {v(AD + u)} offset:{64 * kk}')
        else:
            k(f'ds_read_b128 {v(BUF + 4 * (n % NB), 4)}, {v(VT3)} offset:{64 * kk + 16 * PITCH * u}')
    for n in range(NB): rd(n)
    for n, (kk, u) in enumerate(reads):
        out = min(NB, len(reads) - n)
        k(f's_waitcnt lgkmcnt({out - 1})')
        acc = ACC + 16 * (kk // 8) + 4 * u
        b = BUF + 4 * (n % NB)
        k(f'v_mfma_f32_16x16x32_bf16 {v(acc, 4)}, {v(b, 4)}, {v(F + 4 * (kk % 8), 4)}, {"0" if kk % 8 == 0 else v(acc, 4)}')
        if main and u == 0:
            k(f'v_mfma_f32_16x16x32_bf16 {v(ACCS, 4)}, {v(ONES, 4)}, {v(b, 4)}, {"0" if kk == 0 else v(ACCS, 4)}')
            for j in range(4):
                k(f'v_dot2c_f32_bf16 {v(SQ + j)}, {v(b + j)}, {v(b + j)}')
        if n + NB < len(reads): rd(n + NB)
    k.stamp()
    if main:
        t = BUF
        k(f'''
        v_add_f32 {v(SQ)}, {v(SQ)}, {v(SQ + 1)}
        v_add_f32 {v(SQ + 2)}, {v(SQ + 2)}, {v(SQ + 3)}
        v_add_f32 {v(SQ)}, {v(SQ)}, {v(SQ + 2)}
        v_mov_b32 {v(t)}, {v(SQ)}
        v_permlane32_swap_b32 {v(SQ)}, {v(t)}
        v_add_f32 {v(SQ)}, {v(SQ)}, {v(t)}
        v_mov_b32 {v(t)}, {v(SQ)}
        v_permlane16_swap_b32 {v(SQ)}, {v(t)}
        v_add_f32 {v(SQ)}, {v(SQ)}, {v(t)}
        v_mov_b32 {v(t + 1)}, {fl(1e-5)}
        v_fmamk_f32 {v(SQ)}, {v(SQ)}, {fl(1 / 512)}, {v(t + 1)}
        v_mul_f32 {v(t)}, {fl(1 / 512)}, {v(ACCS)}
        v_fma_f32 {v(SQ)}, -{v(t)}, {v(t)}, {v(SQ)}
        v_rsq_f32 {v(t)}, {v(SQ)}
        s_lshl_b32 s22, s3, 6
        s_add_u32 s22, s22, {STAT}
        v_lshl_add_u32 {v(t + 1)}, {v(VI)}, 2, s22
        ds_write_b32 {v(t + 1)}, {v(t)}
        v_mul_f32 {v(SQ)}, {v(SQ)}, {v(t)}
        v_lshl_add_u32 {v(t + 2)}, {v(VG)}, 4, s22
        ''')
        for r in range(16):
            k(f'v_fma_f32 {v(ACC + r)}, {v(ACC + 16 + r)}, {v(SGN)}, {v(ACC + r)}')
        k('s_waitcnt lgkmcnt(0)\ns_barrier')
        RS = ACC + 16
        for u in range(4):
            k(f'v_xor_b32 {v(t + 3)}, {64 * u}, {v(t + 2)}')
            k(f'ds_read_b128 {v(RS + 4 * u, 4)}, {v(t + 3)}')
        k.srd(48, 20, 2 * MB, Z_OFF)
        k.srd(52, 20, 2 * MB, WT_OFF)
        k(f'''
        s_lshl_b32 s22, s31, 6
        s_lshl_b32 s23, s3, 4
        s_add_u32 s22, s22, s23
        v_add_u32 {v(t + 4)}, s22, {v(VI)}
        v_lshlrev_b32 {v(t + 4)}, 12, {v(t + 4)}
        v_lshl_add_u32 {v(t + 4)}, {v(VG)}, 5, {v(t + 4)}
        s_lshl_b32 s23, s37, 7
        ''')
        for u in range(4):
            k(f's_waitcnt lgkmcnt({3 - u})')
            for r in range(4):
                k(f'v_mul_f32 {v(ACC + 4 * u + r)}, {v(ACC + 4 * u + r)}, {v(RS + 4 * u + r)}')
            k(f'v_cvt_pk_bf16_f32 {v(ACC + 4 * u)}, {v(ACC + 4 * u)}, {v(ACC + 4 * u + 1)}')
            k(f'v_cvt_pk_bf16_f32 {v(ACC + 4 * u + 1)}, {v(ACC + 4 * u + 2)}, {v(ACC + 4 * u + 3)}')
            k(f's_xor_b32 s22, s3, {u}\ns_lshl_b32 s22, s22, 3\ns_add_u32 s22, s22, s23')
            k(f'buffer_store_dwordx2 {v(ACC + 4 * u, 2)}, {v(t + 4)}, s[48:51], s22 offen')
        k('s_waitcnt vmcnt(4)')
        for r in range(8):
            k(f'v_lshl_or_b32 {v(WTR + r)}, {v(WTH + r)}, 16, {v(WTR + r)}')
        k(f'''
        buffer_store_dwordx4 {v(WTR, 4)}, {v(VT)}, s[52:55], s38 offen
        buffer_store_dwordx4 {v(WTR + 4, 4)}, {v(VT)}, s[52:55], s38 offen offset:16
        ''')
        k.stamp()
        k.dump(0, F)
        k('''
        s_mov_b64 exec, -1
        s_cmp_lg_u32 s31, 0
        s_cbranch_scc1 S0_END
        ''')
        k.srd(48, 20, 8192, STD_OFF)
        k(f'''
        v_lshrrev_b32 {v(t + 5)}, 2, {v(VI)}
        v_lshlrev_b32 {v(t + 5)}, 4, {v(t + 5)}
        v_and_b32 {v(t + 6)}, 3, {v(VI)}
        v_add_u32 {v(t + 5)}, {v(t + 5)}, {v(t + 6)}
        v_lshlrev_b32 {v(t + 5)}, 2, {v(t + 5)}
        s_lshl_b32 s22, s37, 8
        s_lshl_b32 s23, s3, 4
        s_add_u32 s22, s22, s23
        buffer_store_dword {v(SQ)}, {v(t + 5)}, s[48:51], s22 offen
        s_endpgm
        ''')
    else:
        k.srd(48, 20, 512 * 1024, WOP_OFF)
        k('''
        s_lshl_b32 s22, s37, 3
        s_add_u32 s22, s22, s31
        s_lshl_b32 s22, s22, 2
        s_add_u32 s22, s22, s3
        s_lshl_b32 s22, s22, 11
        ''')
        for r in range(16):
            k(f'v_fma_f32 {v(ACC + r)}, {v(ACC + 16 + r)}, {v(SGN)}, {v(ACC + r)}')
        for r in range(8):
            k(f'v_cvt_pk_bf16_f32 {v(ACC + 16 + r)}, {v(ACC + 2 * r)}, {v(ACC + 2 * r + 1)}')
        k(f'''
        buffer_store_dwordx4 {v(ACC + 16, 4)}, v4, s[48:51], s22 offen
        buffer_store_dwordx4 {v(ACC + 20, 4)}, v4, s[48:51], s22 offen offset:1024
        ''')
        k.stamp()
        k.dump(1, F)
        k('s_endpgm')

def s0_cols(k, isq):
    F = 8; ACC = 40; BUF = 72; T = 72; AD = 124; VT = 129; VT2 = 130
    NT = 4 if isq else 2
    NB = 8 if isq else 4
    if isq:
        k(f'''
        s_sub_u32 s22, s2, {N_MAIN + N_WO}
        s_lshr_b32 s31, s22, 3           ; f' block
        s_and_b32 s37, s22, 7            ; n block
        v_lshrrev_b32 {v(VT)}, 3, {v(VL)}      ; row
        v_lshrrev_b32 {v(VT2)}, 4, {v(VL)}     ; sigma
        v_lshlrev_b32 {v(VT2)}, 1, {v(VT2)}
        v_and_b32 v4, 7, {v(VL)}
        v_xor_b32 v4, v4, {v(VT2)}
        v_lshlrev_b32 v4, 4, v4
        v_lshl_add_u32 v4, {v(VT)}, 10, v4
        s_lshl_b32 s28, s37, 7
        s_lshl_b32 s22, s3, 13
        s_add_u32 s28, s28, s22
        s_lshl_b32 s32, s3, 10
        s_mov_b32 m0, s32
        s_waitcnt lgkmcnt(0)
        ''')
        k.srd(24, 12, 512 * 1024)
        for m in range(16):
            if m:
                k('s_add_u32 m0, m0, 4096\ns_add_u32 s28, s28, 32768')
            k('buffer_load_dwordx4 v4, s[24:27], s28 offen lds')
        rp = 128
    else:
        k(f'''
        s_sub_u32 s31, s2, {N_MAIN + N_WO + N_WQ}
        v_lshlrev_b32 v4, 4, {v(VL)}
        s_lshl_b32 s28, s3, 12
        s_mov_b32 m0, s28
        s_waitcnt lgkmcnt(0)
        ''')
        k.srd(24, 14, 16384)
        k.srd(40, 16, 16384)
        for m in range(4):
            k(f'buffer_load_dwordx4 v4, s[24:27], s28 offen offset:{1024 * m} lds')
        k('s_add_u32 m0, m0, 16384\ns_nop 0')
        for m in range(4):
            k(f'buffer_load_dwordx4 v4, s[40:43], s28 offen offset:{1024 * m} lds')
        rp = 32
    k.setstamp(1); k.stamp()
    fgen(k, F, T, 4.0, 16, QSCALE if isq else 1.0, True)
    k.stamp()
    k(f'''
    v_lshrrev_b32 {v(VT)}, 2, {v(VL)}       ; 4g + r
    v_and_b32 {v(VT2)}, 3, {v(VL)}
    v_lshlrev_b32 {v(VT2)}, 3, {v(VT2)}
    v_mul_u32_u24 {v(AD)}, {rp}, {v(VT)}
    v_add_u32 {v(AD)}, {v(AD)}, {v(VT2)}
    ''')
    if isq:
        k(f'''
        v_lshrrev_b32 {v(VT)}, 1, {v(VT)}
        v_and_b32 {v(VT)}, 3, {v(VT)}
        v_lshl_add_u32 {v(AD)}, {v(VT)}, 5, {v(AD)}
        ''')
        for t in range(1, 4):
            k(f'v_xor_b32 {v(AD + t)}, {32 * t}, {v(AD)}')
    k('s_waitcnt vmcnt(0)')
    k.stamp()
    k('s_barrier')
    k.stamp()
    reads = [(kk, t) for kk in range(16) for t in range(NT)]
    NBB = 7 if isq else 4
    def rd(n):
        kk, t = reads[n]
        b = BUF + 4 * (n % NBB)
        for hf in range(2):
            if isq:
                k(f'ds_read_b64_tr_b16 {v(b + 2 * hf, 2)}, {v(AD + t)} offset:{(32 * kk + 16 * hf) * rp}')
            else:
                k(f'ds_read_b64_tr_b16 {v(b + 2 * hf, 2)}, {v(AD)} offset:{(32 * kk + 16 * hf) * rp + 16384 * t}')
    for n in range(NBB): rd(n)
    for n, (kk, t) in enumerate(reads):
        out = min(NBB, len(reads) - n)
        k(f's_waitcnt lgkmcnt({2 * (out - 1)})')
        acc = ACC + 16 * (kk // 8) + 4 * t
        b = BUF + 4 * (n % NBB)
        k(f'v_mfma_f32_16x16x32_bf16 {v(acc, 4)}, {v(F + 4 * (kk % 8), 4)}, {v(b, 4)}, {"0" if kk % 8 == 0 else v(acc, 4)}')
        if n + NBB < len(reads): rd(n + NBB)
    k.stamp()
    k.srd(48, 20, WQ_SIZE, WQ_OFF)
    k(f'''
    v_lshlrev_b32 v4, 4, {v(VL)}
    s_lshl_b32 s22, s31, 1
    s_lshr_b32 s23, s3, 1
    s_add_u32 s22, s22, s23
    s_lshl_b32 s22, s22, 10
    s_and_b32 s23, s3, 1
    s_lshl_b32 s23, s23, 3
    s_add_u32 s22, s22, s23
    ''')
    if isq:
        k('s_lshl_b32 s23, s37, 16\ns_add_u32 s22, s22, s23')
    else:
        k(f's_add_u32 s22, s22, {32 * 16384}')
    for t in range(NT):
        for r in range(4):
            op = 'v_add_f32' if r < 2 else 'v_sub_f32'
            k(f'{op} {v(ACC + 4 * t + r)}, {v(ACC + 4 * t + r)}, {v(ACC + 16 + 4 * t + r)}')
        k(f'v_cvt_pk_bf16_f32 {v(ACC + 4 * t)}, {v(ACC + 4 * t)}, {v(ACC + 4 * t + 1)}')
        k(f'v_cvt_pk_bf16_f32 {v(ACC + 4 * t + 1)}, {v(ACC + 4 * t + 2)}, {v(ACC + 4 * t + 3)}')
        k(f'buffer_store_dwordx2 {v(ACC + 4 * t, 2)}, v4, s[48:51], s22 offen')
        if t + 1 < NT: k('s_add_u32 s22, s22, 16384')
    k.stamp()
    k.dump(2 if isq else 3, F)
    k('s_endpgm')

def s0_ft(k):
    base = N_MAIN + N_WO + N_WQ + N_KV
    D, FB, TT, OUT = 8, 9, 10, 20
    k(f'''
    s_sub_u32 s22, s2, {base}
    s_lshl_b32 s22, s22, 2
    s_add_u32 s22, s22, s3
    s_lshr_b32 s23, s22, 3
    s_lshl_b32 s23, s23, 4
    v_add_u32 {v(D)}, s23, {v(VI)}              ; d
    s_and_b32 s23, s22, 7
    s_lshl_b32 s23, s23, 5                      ; 16*kappa0
    v_lshl_add_u32 {v(FB)}, {v(VG)}, 1, s23     ; f base
    s_lshl_b32 s22, s22, 11
    s_add_u32 s22, s22, {34 * 16384}
    v_lshlrev_b32 v4, 4, {v(VL)}
    s_waitcnt lgkmcnt(0)
    ''')
    k.srd(48, 20, WQ_SIZE, WQ_OFF)
    for e in range(2):
        for q in range(4):
            off = 16 * e + 8 * (q // 2) + (q % 2)
            k(f'''
            v_add_u32 {v(TT)}, {off}, {v(FB)}
            v_mul_u32_u24 {v(TT)}, {v(TT)}, {v(D)}
            v_and_b32 {v(TT)}, 0x1ff, {v(TT)}
            v_cvt_f32_u32 {v(TT)}, {v(TT)}
            v_mul_f32 {v(TT)}, {fl(1 / 512)}, {v(TT)}
            v_cos_f32 {v(TT + 1)}, {v(TT)}
            v_sin_f32 {v(TT + 2)}, {v(TT)}
            v_mul_f32 {v(TT + 1)}, {fl(1 / 16)}, {v(TT + 1)}
            v_mul_f32 {v(TT + 2)}, {fl(-1 / 16)}, {v(TT + 2)}
            v_cvt_pk_bf16_f32 {v(OUT + 4 * e + q)}, {v(TT + 1)}, {v(TT + 2)}
            ''')
    bfv = BF16_RS512
    k(f'''
    v_lshlrev_b32 {v(TT)}, 31, {v(D)}
    v_or_b32 {v(TT)}, {bfv | (bfv << 16):#x}, {v(TT)}
    v_cmp_eq_u32 vcc, 0, {v(FB)}
    s_nop 1
    v_cndmask_b32 {v(OUT)}, {v(OUT)}, {v(TT)}, vcc
    buffer_store_dwordx4 {v(OUT, 4)}, v4, s[48:51], s22 offen
    buffer_store_dwordx4 {v(OUT + 4, 4)}, v4, s[48:51], s22 offen offset:1024
    ''')
    k.setstamp(1); k.stamp()
    k.dump(4, 8)
    k('s_endpgm')

def s0_wof(k):
    base = N_MAIN + N_WO + N_WQ + N_KV + N_FT
    R = 8
    k(f'''
    s_sub_u32 s22, s2, {base}
    s_lshl_b32 s22, s22, 2
    s_add_u32 s22, s22, s3
    s_lshr_b32 s23, s22, 4
    s_lshl_b32 s28, s23, 16             ; cb*64*1024
    s_and_b32 s23, s22, 1
    s_lshl_b32 s29, s23, 15
    s_add_u32 s28, s28, s29
    s_lshl_b32 s30, s23, 10
    s_lshr_b32 s23, s22, 1
    s_lshl_b32 s29, s23, 13
    s_add_u32 s30, s30, s29             ; (cb*8+wa)*8192
    s_and_b32 s23, s23, 7
    s_lshl_b32 s23, s23, 7
    s_add_u32 s28, s28, s23
    v_lshlrev_b32 v4, 1, {v(VL)}
    v_lshrrev_b32 v5, 2, {v(VL)}
    v_and_b32 v5, 3, v5
    v_lshlrev_b32 v5, 11, v5            ; n*2048
    v_and_b32 v6, 3, {v(VL)}
    v_lshl_add_u32 v6, {v(VG)}, 2, v6   ; i
    v_lshl_add_u32 v5, v6, 4, v5
    s_waitcnt lgkmcnt(0)
    ''')
    k.srd(24, 18, 512 * 1024)
    k.srd(48, 20, 512 * 1024, WOF_OFF)
    for g in range(4):
        for jj in range(2):
            for j in range(4):
                k(f'buffer_load_ushort {v(R + 16 * (j % 2) + 4 * g + 2 * jj + j // 2)}, v4, s[24:27], s28 offen offset:{1024 * j}')
            k('s_add_u32 s28, s28, 4096')
    for g in range(4):
        k(f's_waitcnt vmcnt({8 * (3 - g) + g})')
        for r in range(4):
            k(f'v_lshl_or_b32 {v(R + 4 * g + r)}, {v(R + 16 + 4 * g + r)}, 16, {v(R + 4 * g + r)}')
        k(f'buffer_store_dwordx4 {v(R + 4 * g, 4)}, v5, s[48:51], s30 offen offset:{256 * g}')
    k.setstamp(1); k.stamp()
    k.dump(5, 60)
    k('s_endpgm')

def build():
    k = Kern('s0_kernel', S0_GRID, 256, S0_LDS, 140)
    k.stamp()
    k(f'''
    s_load_dwordx16 s[4:19], s[0:1], 0
    s_load_dwordx2 s[20:21], s[0:1], 80
    v_lshrrev_b32 v1, 6, v0
    v_and_b32 v0, 63, v0
    v_readfirstlane_b32 s3, v1
    v_and_b32 {v(VI)}, 15, v0
    v_lshrrev_b32 {v(VG)}, 4, v0
    s_cmp_ge_u32 s2, {N_MAIN}
    s_cbranch_scc1 S0_X
    ''')
    s0_rows(k, True)
    k.label('S0_X')
    k(f's_cmp_ge_u32 s2, {N_MAIN + N_WO}\ns_cbranch_scc1 S0_Y')
    s0_rows(k, False)
    k.label('S0_Y')
    k(f's_cmp_ge_u32 s2, {N_MAIN + N_WO + N_WQ}\ns_cbranch_scc1 S0_KV')
    s0_cols(k, True)
    k.label('S0_KV')
    k(f's_cmp_ge_u32 s2, {N_MAIN + N_WO + N_WQ + N_KV}\ns_cbranch_scc1 S0_FT')
    s0_cols(k, False)
    k.label('S0_FT')
    k(f's_cmp_ge_u32 s2, {N_MAIN + N_WO + N_WQ + N_KV + N_FT}\ns_cbranch_scc1 S0_WOF')
    s0_ft(k)
    k.label('S0_WOF')
    k(f's_cmp_ge_u32 s2, {S0_GRID}\ns_cbranch_scc1 S0_END')
    s0_wof(k)
    k.label('S0_END')
    k('s_endpgm')
    return k
```

```python
import re, struct

def v(n, c=1):
    return f'v{n}' if c == 1 else f'v[{n}:{n+c-1}]'
def a(n, c=1):
    return f'a{n}' if c == 1 else f'a[{n}:{n+c-1}]'
def s(n, c=1):
    return f's{n}' if c == 1 else f's[{n}:{n+c-1}]'
def fl(x):
    return '0x%08x' % struct.unpack('<I', struct.pack('<f', x))[0]

TRANS = {'v_exp_f32', 'v_log_f32', 'v_rcp_f32', 'v_rsq_f32', 'v_sqrt_f32', 'v_sin_f32', 'v_cos_f32'}
REG = re.compile(r'^(-|\|)?([vas])(?:\[(\d+):(\d+)\]|(\d+))\|?$')

def regs_of(tok):
    tok = tok.strip()
    if tok in ('vcc', 'exec'):
        return {tok + '_lo', tok + '_hi'}
    if tok in ('vcc_lo', 'vcc_hi', 'exec_lo', 'exec_hi', 'm0'):
        return {tok}
    m = REG.match(tok)
    if not m:
        return set()
    k = m.group(2)
    if m.group(5) is not None:
        return {k + m.group(5)}
    return {k + str(i) for i in range(int(m.group(3)), int(m.group(4)) + 1)}

class Ins:
    __slots__ = ('text', 'op', 'kind', 'w', 'r', 'A', 'B', 'C', 'D', 'passes', 'dpp', 'ws', 'label', 'target', 'wide', 'lds', 'data', 'opsel')
    def __init__(self, text):
        self.text = text
        t = text.split(';')[0].strip()
        self.label = None; self.target = None
        self.w = set(); self.r = set(); self.A = self.B = self.C = self.D = set()
        self.passes = 0; self.dpp = set(); self.ws = 1; self.wide = False; self.lds = False; self.data = set(); self.opsel = False
        if not t or t.startswith('.'):
            self.kind = 'none'; self.op = ''; self.ws = 0; return
        if t.endswith(':'):
            self.kind = 'label'; self.op = ''; self.label = t[:-1]; self.ws = 0; return
        parts = t.split(None, 1)
        op = parts[0]; self.op = op
        rest = parts[1] if len(parts) > 1 else ''
        ops = [o.strip() for o in rest.split(',')]
        mods = ''
        if ops and ' ' in ops[-1]:
            x = ops[-1].split(None, 1); ops[-1] = x[0]; mods = x[1]
        R = [regs_of(o) for o in ops]
        base = re.sub(r'_(e32|e64|dpp|sdwa)$', '', op)
        self.op = base
        if base.startswith('v_mfma'):
            self.kind = 'mfma'
            self.D, self.A, self.B, self.C = R[0], R[1], R[2], R[3]
            self.w = set(self.D); self.r = self.A | self.B | self.C
            self.passes = 8 if '32x32x16' in base else 4
        elif base.startswith('v_'):
            self.kind = 'valu'
            if base.startswith('v_permlane') or base.startswith('v_swap'):
                self.w = R[0] | R[1]; self.r = R[0] | R[1]
            elif base in ('v_add_co_u32', 'v_sub_co_u32', 'v_addc_co_u32', 'v_subb_co_u32', 'v_subrev_co_u32'):
                self.w = R[0] | R[1]
                for x in R[2:]: self.r |= x
            else:
                self.w = set(R[0])
                for x in R[1:]: self.r |= x
                if base.startswith(('v_fmac', 'v_mac', 'v_dot2c', 'v_pk_fmac')) or 'row_' in mods or 'quad_perm' in mods:
                    self.r |= R[0]
                if base.startswith('v_cmpx'):
                    self.w |= {'exec_lo', 'exec_hi'}
            if 'row_' in mods or 'quad_perm' in mods or 'wave_' in mods:
                self.dpp = set(R[1])
            if 'op_sel' in mods and not base.startswith('v_pk') and not base.startswith('v_dot'):
                self.opsel = True
            if 'dst_sel' in mods: self.opsel = True
        elif base.startswith('ds_'):
            self.kind = 'ds'
            if base.startswith(('ds_read', 'ds_bpermute', 'ds_permute', 'ds_swizzle')) or '_rtn' in base:
                self.w = set(R[0])
                for x in R[1:]: self.r |= x
            else:
                for x in R: self.r |= x
        elif base.startswith(('buffer_', 'global_', 'flat_')):
            self.kind = 'vmem'
            islds = ' lds' in (' ' + mods) or 'load_lds' in base
            self.lds = islds
            if 'load' in base and not islds:
                self.w = set(R[0])
                for x in R[1:]: self.r |= x
                if 'd16' in base: self.r |= R[0]
            else:
                for x in R: self.r |= x
                if 'store' in base and ('x3' in base or 'x4' in base):
                    self.wide = True
                    self.data = R[0] if base.startswith('buffer') else R[1]
            if islds: self.r |= {'m0'}
        elif base.startswith('s_'):
            self.kind = 'salu'
            if base == 's_nop':
                self.ws = int(ops[0], 0) + 1
            elif base.startswith(('s_cbranch', 's_branch')):
                self.target = ops[0]
            elif base.startswith(('s_cmp', 's_waitcnt', 's_barrier', 's_endpgm', 's_setprio', 's_sleep', 's_bitcmp')):
                for x in R: self.r |= x
            else:
                self.w = set(R[0])
                for x in R[1:]: self.r |= x
                if 'saveexec' in base: self.w |= {'exec_lo', 'exec_hi'}
        else:
            raise ValueError('unknown op ' + text)

def isv(r): return r[0] in 'va' and r[1:].isdigit()
def vg(st): return {r for r in st if isv(r)}
def sg(st): return {r for r in st if not isv(r)}

def need(p, c):
    n = 0
    if p.kind == 'valu':
        pw = vg(p.w); ps = sg(p.w)
        isdot = p.op.startswith('v_dot')
        if c.kind == 'mfma' and pw & c.r: n = max(n, 3 if isdot else 2)
        if c.kind == 'valu':
            if p.op in TRANS and c.op not in TRANS and pw & c.r: n = max(n, 1)
            if p.op in TRANS and c.op in TRANS and pw & c.r: n = max(n, 1)
            if pw & c.dpp: n = max(n, 2)
            if c.op.startswith('v_permlane') and pw & c.r: n = max(n, 2)
            if c.op.startswith(('v_readlane', 'v_readfirstlane')) and pw & c.r: n = max(n, 1)
            rd = set(c.r)
            if c.op.startswith('v_cndmask') and not sg(c.r): rd |= {'vcc_lo', 'vcc_hi'}
            if c.op in ('v_addc_co_u32', 'v_subb_co_u32'): rd |= {'vcc_lo', 'vcc_hi'}
            if ps & rd: n = max(n, 4 if c.op.startswith(('v_readlane', 'v_writelane')) else 2)
            if p.opsel and pw & (c.r | c.w): n = max(n, 1)
            if isdot and pw & (c.r | c.w):
                if c.op == p.op:
                    ops = [o.strip() for o in c.text.split(';')[0].split(None, 1)[1].split(',')]
                    ab = regs_of(ops[1].split()[0]) | regs_of(ops[2].split()[0])
                    if pw & ab: n = max(n, 3)
                else:
                    n = max(n, 3)
            if 'exec_lo' in ps and (c.dpp or c.op.startswith(('v_permlane', 'v_readlane', 'v_readfirstlane'))): n = max(n, 5)
        if c.kind in ('vmem', 'ds'):
            if ps & c.r: n = max(n, 5)
            if isdot and pw & c.r: n = max(n, 3)
            if p.op in TRANS and pw & c.r: n = max(n, 1)
        if c.kind == 'mfma' and 'exec_lo' in ps: n = max(n, 4)
    elif p.kind == 'mfma':
        big = 12 if p.passes == 8 else 8
        if c.kind == 'mfma':
            if p.D & c.C:
                if not (p.D == c.C and p.passes == c.passes): n = max(n, big - 2)
            if p.D & (c.A | c.B): n = max(n, big)
            if p.D & c.D and not (p.D == c.C): n = max(n, big)
        elif c.kind in ('valu', 'vmem', 'ds'):
            if p.D & (c.r | c.w): n = max(n, big)
            if c.kind == 'valu' and p.C & c.w: n = max(n, 7 if p.passes == 8 else 3)
            if c.kind in ('vmem', 'ds') and p.C & c.w: n = max(n, 7 if p.passes == 8 else 3)
    elif p.kind == 'salu':
        if 'm0' in p.w and (c.lds or 'addtid' in c.op): n = max(n, 1)
    elif p.kind == 'vmem':
        if p.wide and c.kind in ('valu', 'mfma') and p.data & c.w: n = max(n, 2)
        if p.wide and c.kind in ('vmem', 'ds') and p.data & c.w: n = max(n, 1)
    return n

def fix_hazards(lines, name=''):
    ins = [Ins(l) for l in lines]
    out = []
    nfix = 0
    def back(seq, c):
        d = 0; miss = 0
        for p in reversed(seq):
            if d >= 14: break
            if p.kind in ('none', 'label'): continue
            if p.op in ('s_branch', 's_endpgm'): break
            n = need(p, c)
            if n - d > miss: miss = n - d
            d += p.ws
        return miss
    for c in ins:
        if c.kind not in ('none', 'label'):
            m = back(out[-40:], c)
            if m > 0:
                out.append(Ins(f'    s_nop {m-1}'))
                nfix += m
        out.append(c)
    lab = {i.label: k for k, i in enumerate(out) if i.kind == 'label'}
    for k, b in enumerate(out):
        if b.target is not None:
            pre = out[max(0, k - 40):k] + [Ins('s_nop 0')]
            t = lab[b.target]
            seq = list(pre)
            cnt = 0
            for c in out[t:t + 40]:
                if c.kind in ('none', 'label'): continue
                m = back(seq, c)
                if m > 0:
                    raise RuntimeError(f'{name}: hazard across branch {b.text.strip()} -> {c.text.strip()} missing {m}')
                seq.append(c); cnt += c.ws
                if cnt > 14 or c.op in ('s_branch', 's_endpgm'): break
    return [i.text for i in out], nfix

class Kern:
    def __init__(self, name, grid, block, lds, vgpr, sgpr=96, agpr=0):
        self.name = name; self.grid = grid; self.block = block; self.lds = lds
        self.vgpr = vgpr; self.sgpr = sgpr; self.agpr = agpr
        self.lines = []
    def __call__(self, txt):
        for l in txt.split('\n'):
            l = l.strip()
            if not l: continue
            self.lines.append(l if l.endswith(':') and ' ' not in l else '    ' + l)
    def label(self, n):
        self.lines.append(f'{n}:')
    def srd(self, d, blo, size, off=0):
        if off:
            self(f's_add_u32 s{d}, s{blo}, {hex(off)}\ns_addc_u32 s{d+1}, s{blo+1}, 0')
        elif d != blo:
            self(f's_mov_b32 s{d}, s{blo}\ns_mov_b32 s{d+1}, s{blo+1}')
        self(f's_mov_b32 s{d+2}, {hex(size)}\ns_mov_b32 s{d+3}, 0x20000')
    def stamp(self):
        import os
        if os.environ.get('TL') and not getattr(self, 'tl0', 0):
            self.tl0 = 1
            self('s_memrealtime s[56:57]')
        if not os.environ.get('PROF'): return
        n = getattr(self, 'nst', 0); self.nst = n + 1
        assert n < 18
        if n == 0: self('s_memrealtime s[56:57]')
        self(f's_memtime s[{60 + 2 * n}:{61 + 2 * n}]')
    def dump(self, slot, vt, keep=True):
        import os
        if os.environ.get('TL'):
            self(f'''
            s_waitcnt vmcnt(0)
            s_memrealtime s[58:59]
            s_load_dwordx2 s[48:49], s[0:1], 72
            s_mov_b64 exec, 1
            s_waitcnt lgkmcnt(0)
            s_and_b32 s50, s48, 0xe00
            s_sub_u32 s44, s48, s50
            s_subb_u32 s45, s49, 0
            s_mov_b32 s46, 64
            s_mov_b32 s47, 0x20000
            s_lshr_b32 s50, s50, 6
            v_mov_b32 v{vt}, 0
            s_not_b32 s56, s56
            v_mov_b32 v{vt + 1}, s56
            buffer_atomic_umax v{vt + 1}, v{vt}, s[44:47], s50 offen
            v_mov_b32 v{vt + 1}, s58
            buffer_atomic_umax v{vt + 1}, v{vt}, s[44:47], s50 offen offset:4
            ''')
        if not os.environ.get('PROF'): return
        self('s_waitcnt vmcnt(0)')
        self.stamp()
        self('s_memrealtime s[58:59]')
        self('s_load_dwordx2 s[48:49], s[0:1], 72')
        self('s_mov_b64 exec, 1\ns_waitcnt lgkmcnt(0) vmcnt(0)')
        self.srd(44, 48, 1 << 19)
        self(f's_lshl_b32 s48, s2, 3\ns_add_u32 s48, s48, s3\ns_lshl_b32 s48, s48, 7\nv_mov_b32 v{vt}, 0')
        self(f'v_mov_b32 v{vt + 1}, s56\nbuffer_store_dword v{vt + 1}, v{vt}, s[44:47], s48 offen offset:120')
        self(f'v_mov_b32 v{vt + 1}, s58\nbuffer_store_dword v{vt + 1}, v{vt}, s[44:47], s48 offen offset:124')
        self(f'v_mov_b32 v{vt + 1}, {slot}\nbuffer_store_dword v{vt + 1}, v{vt}, s[44:47], s48 offen offset:116')
        for n in range(self.nst):
            self(f'v_mov_b32 v{vt + 1}, s{60 + 2 * n}\nbuffer_store_dword v{vt + 1}, v{vt}, s[44:47], s48 offen offset:{4 * n}')
        self.nst -= 1
    def setstamp(self, n):
        self.nst = n
    def text(self):
        body, nf = fix_hazards(self.lines, self.name)
        mx = 0
        for l in body:
            for m in re.finditer(r'\bv\[?(\d+)(?::(\d+))?', l.split(';')[0]):
                mx = max(mx, int(m.group(2) or m.group(1)))
        assert mx < self.vgpr, (self.name, mx, self.vgpr)
        self.info = f'{self.name}: {len(body)} lines, {nf} nop states inserted, max v{mx}'
        return f'.globl {self.name}\n.p2align 8\n.type {self.name},@function\n{self.name}:\n' + '\n'.join(body) + '\n'
    def desc(self):
        acc = (self.vgpr + 3) // 4 * 4
        return f'''.p2align 6
.amdhsa_kernel {self.name}
  .amdhsa_next_free_vgpr {acc + self.agpr}
  .amdhsa_next_free_sgpr {self.sgpr}
  .amdhsa_accum_offset {acc}
  .amdhsa_group_segment_fixed_size 0
  .amdhsa_kernarg_size 88
  .amdhsa_user_sgpr_count 2
  .amdhsa_user_sgpr_kernarg_segment_ptr 1
  .amdhsa_system_sgpr_workgroup_id_x 1
.end_amdhsa_kernel
'''
```

```python
import re, struct

def v(n, c=1):
    return f'v{n}' if c == 1 else f'v[{n}:{n+c-1}]'
def a(n, c=1):
    return f'a{n}' if c == 1 else f'a[{n}:{n+c-1}]'
def s(n, c=1):
    return f's{n}' if c == 1 else f's[{n}:{n+c-1}]'
def fl(x):
    return '0x%08x' % struct.unpack('<I', struct.pack('<f', x))[0]

TRANS = {'v_exp_f32', 'v_log_f32', 'v_rcp_f32', 'v_rsq_f32', 'v_sqrt_f32', 'v_sin_f32', 'v_cos_f32'}
REG = re.compile(r'^(-|\|)?([vas])(?:\[(\d+):(\d+)\]|(\d+))\|?$')

def regs_of(tok):
    tok = tok.strip()
    if tok in ('vcc', 'exec'):
        return {tok + '_lo', tok + '_hi'}
    if tok in ('vcc_lo', 'vcc_hi', 'exec_lo', 'exec_hi', 'm0'):
        return {tok}
    m = REG.match(tok)
    if not m:
        return set()
    k = m.group(2)
    if m.group(5) is not None:
        return {k + m.group(5)}
    return {k + str(i) for i in range(int(m.group(3)), int(m.group(4)) + 1)}

class Ins:
    __slots__ = ('text', 'op', 'kind', 'w', 'r', 'A', 'B', 'C', 'D', 'passes', 'dpp', 'ws', 'label', 'target', 'wide', 'lds', 'data', 'opsel')
    def __init__(self, text):
        self.text = text
        t = text.split(';')[0].strip()
        self.label = None; self.target = None
        self.w = set(); self.r = set(); self.A = self.B = self.C = self.D = set()
        self.passes = 0; self.dpp = set(); self.ws = 1; self.wide = False; self.lds = False; self.data = set(); self.opsel = False
        if not t or t.startswith('.'):
            self.kind = 'none'; self.op = ''; self.ws = 0; return
        if t.endswith(':'):
            self.kind = 'label'; self.op = ''; self.label = t[:-1]; self.ws = 0; return
        parts = t.split(None, 1)
        op = parts[0]; self.op = op
        rest = parts[1] if len(parts) > 1 else ''
        ops = [o.strip() for o in rest.split(',')]
        mods = ''
        if ops and ' ' in ops[-1]:
            x = ops[-1].split(None, 1); ops[-1] = x[0]; mods = x[1]
        R = [regs_of(o) for o in ops]
        base = re.sub(r'_(e32|e64|dpp|sdwa)$', '', op)
        self.op = base
        if base.startswith('v_mfma'):
            self.kind = 'mfma'
            self.D, self.A, self.B, self.C = R[0], R[1], R[2], R[3]
            self.w = set(self.D); self.r = self.A | self.B | self.C
            self.passes = 8 if '32x32x16' in base else 4
        elif base.startswith('v_'):
            self.kind = 'valu'
            if base.startswith('v_permlane') or base.startswith('v_swap'):
                self.w = R[0] | R[1]; self.r = R[0] | R[1]
            elif base in ('v_add_co_u32', 'v_sub_co_u32', 'v_addc_co_u32', 'v_subb_co_u32', 'v_subrev_co_u32'):
                self.w = R[0] | R[1]
                for x in R[2:]: self.r |= x
            else:
                self.w = set(R[0])
                for x in R[1:]: self.r |= x
                if base.startswith(('v_fmac', 'v_mac', 'v_dot2c', 'v_pk_fmac')) or 'row_' in mods or 'quad_perm' in mods:
                    self.r |= R[0]
                if base.startswith('v_cmpx'):
                    self.w |= {'exec_lo', 'exec_hi'}
            if 'row_' in mods or 'quad_perm' in mods or 'wave_' in mods:
                self.dpp = set(R[1])
            if 'op_sel' in mods and not base.startswith('v_pk') and not base.startswith('v_dot'):
                self.opsel = True
            if 'dst_sel' in mods: self.opsel = True
        elif base.startswith('ds_'):
            self.kind = 'ds'
            if base.startswith(('ds_read', 'ds_bpermute', 'ds_permute', 'ds_swizzle')) or '_rtn' in base:
                self.w = set(R[0])
                for x in R[1:]: self.r |= x
            else:
                for x in R: self.r |= x
        elif base.startswith(('buffer_', 'global_', 'flat_')):
            self.kind = 'vmem'
            islds = ' lds' in (' ' + mods) or 'load_lds' in base
            self.lds = islds
            if 'load' in base and not islds:
                self.w = set(R[0])
                for x in R[1:]: self.r |= x
                if 'd16' in base: self.r |= R[0]
            else:
                for x in R: self.r |= x
                if 'store' in base and ('x3' in base or 'x4' in base):
                    self.wide = True
                    self.data = R[0] if base.startswith('buffer') else R[1]
            if islds: self.r |= {'m0'}
        elif base.startswith('s_'):
            self.kind = 'salu'
            if base == 's_nop':
                self.ws = int(ops[0], 0) + 1
            elif base.startswith(('s_cbranch', 's_branch')):
                self.target = ops[0]
            elif base.startswith(('s_cmp', 's_waitcnt', 's_barrier', 's_endpgm', 's_setprio', 's_sleep', 's_bitcmp')):
                for x in R: self.r |= x
            else:
                self.w = set(R[0])
                for x in R[1:]: self.r |= x
                if 'saveexec' in base: self.w |= {'exec_lo', 'exec_hi'}
        else:
            raise ValueError('unknown op ' + text)

def isv(r): return r[0] in 'va' and r[1:].isdigit()
def vg(st): return {r for r in st if isv(r)}
def sg(st): return {r for r in st if not isv(r)}

def need(p, c):
    n = 0
    if p.kind == 'valu':
        pw = vg(p.w); ps = sg(p.w)
        isdot = p.op.startswith('v_dot')
        if c.kind == 'mfma' and pw & c.r: n = max(n, 3 if isdot else 2)
        if c.kind == 'valu':
            if p.op in TRANS and c.op not in TRANS and pw & c.r: n = max(n, 1)
            if p.op in TRANS and c.op in TRANS and pw & c.r: n = max(n, 1)
            if pw & c.dpp: n = max(n, 2)
            if c.op.startswith('v_permlane') and pw & c.r: n = max(n, 2)
            if c.op.startswith(('v_readlane', 'v_readfirstlane')) and pw & c.r: n = max(n, 1)
            rd = set(c.r)
            if c.op.startswith('v_cndmask') and not sg(c.r): rd |= {'vcc_lo', 'vcc_hi'}
            if c.op in ('v_addc_co_u32', 'v_subb_co_u32'): rd |= {'vcc_lo', 'vcc_hi'}
            if ps & rd: n = max(n, 4 if c.op.startswith(('v_readlane', 'v_writelane')) else 2)
            if p.opsel and pw & (c.r | c.w): n = max(n, 1)
            if isdot and pw & (c.r | c.w):
                if c.op == p.op:
                    ops = [o.strip() for o in c.text.split(';')[0].split(None, 1)[1].split(',')]
                    ab = regs_of(ops[1].split()[0]) | regs_of(ops[2].split()[0])
                    if pw & ab: n = max(n, 3)
                else:
                    n = max(n, 3)
            if 'exec_lo' in ps and (c.dpp or c.op.startswith(('v_permlane', 'v_readlane', 'v_readfirstlane'))): n = max(n, 5)
        if c.kind in ('vmem', 'ds'):
            if ps & c.r: n = max(n, 5)
            if isdot and pw & c.r: n = max(n, 3)
            if p.op in TRANS and pw & c.r: n = max(n, 1)
        if c.kind == 'mfma' and 'exec_lo' in ps: n = max(n, 4)
    elif p.kind == 'mfma':
        big = 12 if p.passes == 8 else 8
        if c.kind == 'mfma':
            if p.D & c.C:
                if not (p.D == c.C and p.passes == c.passes): n = max(n, big - 2)
            if p.D & (c.A | c.B): n = max(n, big)
            if p.D & c.D and not (p.D == c.C): n = max(n, big)
        elif c.kind in ('valu', 'vmem', 'ds'):
            if p.D & (c.r | c.w): n = max(n, big)
            if c.kind == 'valu' and p.C & c.w: n = max(n, 7 if p.passes == 8 else 3)
            if c.kind in ('vmem', 'ds') and p.C & c.w: n = max(n, 7 if p.passes == 8 else 3)
    elif p.kind == 'salu':
        if 'm0' in p.w and (c.lds or 'addtid' in c.op): n = max(n, 1)
    elif p.kind == 'vmem':
        if p.wide and c.kind in ('valu', 'mfma') and p.data & c.w: n = max(n, 2)
        if p.wide and c.kind in ('vmem', 'ds') and p.data & c.w: n = max(n, 1)
    return n

def fix_hazards(lines, name=''):
    ins = [Ins(l) for l in lines]
    out = []
    nfix = 0
    def back(seq, c):
        d = 0; miss = 0
        for p in reversed(seq):
            if d >= 14: break
            if p.kind in ('none', 'label'): continue
            if p.op in ('s_branch', 's_endpgm'): break
            n = need(p, c)
            if n - d > miss: miss = n - d
            d += p.ws
        return miss
    for c in ins:
        if c.kind not in ('none', 'label'):
            m = back(out[-40:], c)
            if m > 0:
                out.append(Ins(f'    s_nop {m-1}'))
                nfix += m
        out.append(c)
    lab = {i.label: k for k, i in enumerate(out) if i.kind == 'label'}
    for k, b in enumerate(out):
        if b.target is not None:
            pre = out[max(0, k - 40):k] + [Ins('s_nop 0')]
            t = lab[b.target]
            seq = list(pre)
            cnt = 0
            for c in out[t:t + 40]:
                if c.kind in ('none', 'label'): continue
                m = back(seq, c)
                if m > 0:
                    raise RuntimeError(f'{name}: hazard across branch {b.text.strip()} -> {c.text.strip()} missing {m}')
                seq.append(c); cnt += c.ws
                if cnt > 14 or c.op in ('s_branch', 's_endpgm'): break
    return [i.text for i in out], nfix

class Kern:
    def __init__(self, name, grid, block, lds, vgpr, sgpr=96, agpr=0):
        self.name = name; self.grid = grid; self.block = block; self.lds = lds
        self.vgpr = vgpr; self.sgpr = sgpr; self.agpr = agpr
        self.lines = []
    def __call__(self, txt):
        for l in txt.split('\n'):
            l = l.strip()
            if not l: continue
            self.lines.append(l if l.endswith(':') and ' ' not in l else '    ' + l)
    def label(self, n):
        self.lines.append(f'{n}:')
    def srd(self, d, blo, size, off=0):
        if off:
            self(f's_add_u32 s{d}, s{blo}, {hex(off)}\ns_addc_u32 s{d+1}, s{blo+1}, 0')
        elif d != blo:
            self(f's_mov_b32 s{d}, s{blo}\ns_mov_b32 s{d+1}, s{blo+1}')
        self(f's_mov_b32 s{d+2}, {hex(size)}\ns_mov_b32 s{d+3}, 0x20000')
    def stamp(self):
        import os
        if os.environ.get('TL') and not getattr(self, 'tl0', 0):
            self.tl0 = 1
            self('s_memrealtime s[56:57]')
        if not os.environ.get('PROF'): return
        n = getattr(self, 'nst', 0); self.nst = n + 1
        assert n < 18
        if n == 0: self('s_memrealtime s[56:57]')
        self(f's_memtime s[{60 + 2 * n}:{61 + 2 * n}]')
    def dump(self, slot, vt, keep=True):
        import os
        if os.environ.get('TL'):
            self(f'''
            s_waitcnt vmcnt(0)
            s_memrealtime s[58:59]
            s_load_dwordx2 s[48:49], s[0:1], 72
            s_or_b32 s50, s2, s3
            s_waitcnt lgkmcnt(0)
            s_cmp_lg_u32 s50, 0
            s_cbranch_scc1 TL_{self.name}_{len(self.lines)}
            s_mov_b64 exec, 1
            s_nop 0
            s_and_b32 s50, s48, 0xe00
            s_add_u32 s44, s20, 0xe00000
            s_addc_u32 s45, s21, 0
            s_mov_b32 s46, 64
            s_mov_b32 s47, 0x20000
            s_lshr_b32 s50, s50, 6
            v_mov_b32 v{vt}, 0
            v_mov_b32 v{vt + 1}, s56
            buffer_store_dword v{vt + 1}, v{vt}, s[44:47], s50 offen
            v_mov_b32 v{vt + 1}, s58
            buffer_store_dword v{vt + 1}, v{vt}, s[44:47], s50 offen offset:4
            '''.replace('@L', ''))
            lab = self.lines[-14].split()[-1]
            if self.name == 'a2_kernel':
                self(f'''
                s_mov_b64 exec, 0xffff
                v_lshlrev_b32 v{vt}, 2, v0
                s_waitcnt vmcnt(0)
                buffer_load_dword v{vt + 1}, v{vt}, s[44:47], 0 offen sc1
                s_mov_b32 s50, 64
                s_mov_b32 s51, 0x20000
                s_waitcnt vmcnt(0)
                buffer_store_dword v{vt + 1}, v{vt}, s[48:51], 0 offen
                s_sub_u32 s48, s48, 3072
                s_subb_u32 s49, s49, 0
                buffer_store_dword v{vt + 1}, v{vt}, s[48:51], 0 offen
                ''')
            self.label(lab)
        if not os.environ.get('PROF'): return
        self('s_waitcnt vmcnt(0)')
        self.stamp()
        self('s_memrealtime s[58:59]')
        self('s_load_dwordx2 s[48:49], s[0:1], 72')
        self('s_mov_b64 exec, 1\ns_waitcnt lgkmcnt(0) vmcnt(0)')
        self.srd(44, 48, 1 << 19)
        self(f's_lshl_b32 s48, s2, 3\ns_add_u32 s48, s48, s3\ns_lshl_b32 s48, s48, 7\nv_mov_b32 v{vt}, 0')
        self(f'v_mov_b32 v{vt + 1}, s56\nbuffer_store_dword v{vt + 1}, v{vt}, s[44:47], s48 offen offset:120')
        self(f'v_mov_b32 v{vt + 1}, s58\nbuffer_store_dword v{vt + 1}, v{vt}, s[44:47], s48 offen offset:124')
        self(f'v_mov_b32 v{vt + 1}, {slot}\nbuffer_store_dword v{vt + 1}, v{vt}, s[44:47], s48 offen offset:116')
        for n in range(self.nst):
            self(f'v_mov_b32 v{vt + 1}, s{60 + 2 * n}\nbuffer_store_dword v{vt + 1}, v{vt}, s[44:47], s48 offen offset:{4 * n}')
        self.nst -= 1
    def setstamp(self, n):
        self.nst = n
    def text(self):
        body, nf = fix_hazards(self.lines, self.name)
        mx = 0
        for l in body:
            for m in re.finditer(r'\bv\[?(\d+)(?::(\d+))?', l.split(';')[0]):
                mx = max(mx, int(m.group(2) or m.group(1)))
        assert mx < self.vgpr, (self.name, mx, self.vgpr)
        self.info = f'{self.name}: {len(body)} lines, {nf} nop states inserted, max v{mx}'
        return f'.globl {self.name}\n.p2align 8\n.type {self.name},@function\n{self.name}:\n' + '\n'.join(body) + '\n'
    def desc(self):
        acc = (self.vgpr + 3) // 4 * 4
        return f'''.p2align 6
.amdhsa_kernel {self.name}
  .amdhsa_next_free_vgpr {acc + self.agpr}
  .amdhsa_next_free_sgpr {self.sgpr}
  .amdhsa_accum_offset {acc}
  .amdhsa_group_segment_fixed_size 0
  .amdhsa_kernarg_size 88
  .amdhsa_user_sgpr_count 2
  .amdhsa_user_sgpr_kernarg_segment_ptr 1
  .amdhsa_system_sgpr_workgroup_id_x 1
.end_amdhsa_kernel
'''
```

```python
import re, struct

def v(n, c=1):
    return f'v{n}' if c == 1 else f'v[{n}:{n+c-1}]'
def a(n, c=1):
    return f'a{n}' if c == 1 else f'a[{n}:{n+c-1}]'
def s(n, c=1):
    return f's{n}' if c == 1 else f's[{n}:{n+c-1}]'
def fl(x):
    return '0x%08x' % struct.unpack('<I', struct.pack('<f', x))[0]

TRANS = {'v_exp_f32', 'v_log_f32', 'v_rcp_f32', 'v_rsq_f32', 'v_sqrt_f32', 'v_sin_f32', 'v_cos_f32'}
REG = re.compile(r'^(-|\|)?([vas])(?:\[(\d+):(\d+)\]|(\d+))\|?$')

def regs_of(tok):
    tok = tok.strip()
    if tok in ('vcc', 'exec'):
        return {tok + '_lo', tok + '_hi'}
    if tok in ('vcc_lo', 'vcc_hi', 'exec_lo', 'exec_hi', 'm0'):
        return {tok}
    m = REG.match(tok)
    if not m:
        return set()
    k = m.group(2)
    if m.group(5) is not None:
        return {k + m.group(5)}
    return {k + str(i) for i in range(int(m.group(3)), int(m.group(4)) + 1)}

class Ins:
    __slots__ = ('text', 'op', 'kind', 'w', 'r', 'A', 'B', 'C', 'D', 'passes', 'dpp', 'ws', 'label', 'target', 'wide', 'lds', 'data', 'opsel')
    def __init__(self, text):
        self.text = text
        t = text.split(';')[0].strip()
        self.label = None; self.target = None
        self.w = set(); self.r = set(); self.A = self.B = self.C = self.D = set()
        self.passes = 0; self.dpp = set(); self.ws = 1; self.wide = False; self.lds = False; self.data = set(); self.opsel = False
        if not t or t.startswith('.'):
            self.kind = 'none'; self.op = ''; self.ws = 0; return
        if t.endswith(':'):
            self.kind = 'label'; self.op = ''; self.label = t[:-1]; self.ws = 0; return
        parts = t.split(None, 1)
        op = parts[0]; self.op = op
        rest = parts[1] if len(parts) > 1 else ''
        ops = [o.strip() for o in rest.split(',')]
        mods = ''
        if ops and ' ' in ops[-1]:
            x = ops[-1].split(None, 1); ops[-1] = x[0]; mods = x[1]
        R = [regs_of(o) for o in ops]
        base = re.sub(r'_(e32|e64|dpp|sdwa)$', '', op)
        self.op = base
        if base.startswith('v_smfmac'):
            self.kind = 'mfma'
            self.D, self.A, self.B, self.C = R[0], R[1], R[2] | R[3], R[0]
            self.w = set(self.D); self.r = self.A | self.B | self.C
            self.passes = 8 if '32x32x32' in base else 4
        elif base.startswith('v_mfma'):
            self.kind = 'mfma'
            self.D, self.A, self.B, self.C = R[0], R[1], R[2], R[3]
            self.w = set(self.D); self.r = self.A | self.B | self.C
            self.passes = 8 if '32x32x16' in base else 4
        elif base.startswith('v_'):
            self.kind = 'valu'
            if base.startswith('v_permlane') or base.startswith('v_swap'):
                self.w = R[0] | R[1]; self.r = R[0] | R[1]
            elif base in ('v_add_co_u32', 'v_sub_co_u32', 'v_addc_co_u32', 'v_subb_co_u32', 'v_subrev_co_u32'):
                self.w = R[0] | R[1]
                for x in R[2:]: self.r |= x
            else:
                self.w = set(R[0])
                for x in R[1:]: self.r |= x
                if base.startswith(('v_fmac', 'v_mac', 'v_dot2c', 'v_pk_fmac')) or 'row_' in mods or 'quad_perm' in mods:
                    self.r |= R[0]
                if base.startswith('v_cmpx'):
                    self.w |= {'exec_lo', 'exec_hi'}
            if 'row_' in mods or 'quad_perm' in mods or 'wave_' in mods:
                self.dpp = set(R[1])
            if 'op_sel' in mods and not base.startswith('v_pk') and not base.startswith('v_dot'):
                self.opsel = True
            if 'dst_sel' in mods: self.opsel = True
        elif base.startswith('ds_'):
            self.kind = 'ds'
            if base.startswith(('ds_read', 'ds_bpermute', 'ds_permute', 'ds_swizzle')) or '_rtn' in base:
                self.w = set(R[0])
                for x in R[1:]: self.r |= x
            else:
                for x in R: self.r |= x
        elif base.startswith(('buffer_', 'global_', 'flat_')):
            self.kind = 'vmem'
            islds = ' lds' in (' ' + mods) or 'load_lds' in base
            self.lds = islds
            if 'load' in base and not islds:
                self.w = set(R[0])
                for x in R[1:]: self.r |= x
                if 'd16' in base: self.r |= R[0]
            else:
                for x in R: self.r |= x
                if 'store' in base and ('x3' in base or 'x4' in base):
                    self.wide = True
                    self.data = R[0] if base.startswith('buffer') else R[1]
            if islds: self.r |= {'m0'}
        elif base.startswith('s_'):
            self.kind = 'salu'
            if base == 's_nop':
                self.ws = int(ops[0], 0) + 1
            elif base.startswith(('s_cbranch', 's_branch')):
                self.target = ops[0]
            elif base.startswith(('s_cmp', 's_waitcnt', 's_barrier', 's_endpgm', 's_setprio', 's_sleep', 's_bitcmp')):
                for x in R: self.r |= x
            else:
                self.w = set(R[0])
                for x in R[1:]: self.r |= x
                if 'saveexec' in base: self.w |= {'exec_lo', 'exec_hi'}
        else:
            raise ValueError('unknown op ' + text)

def isv(r): return r[0] in 'va' and r[1:].isdigit()
def vg(st): return {r for r in st if isv(r)}
def sg(st): return {r for r in st if not isv(r)}

def need(p, c):
    n = 0
    if p.kind == 'valu':
        pw = vg(p.w); ps = sg(p.w)
        isdot = p.op.startswith('v_dot')
        if c.kind == 'mfma' and pw & c.r: n = max(n, 3 if isdot else 2)
        if c.kind == 'valu':
            if p.op in TRANS and c.op not in TRANS and pw & c.r: n = max(n, 1)
            if p.op in TRANS and c.op in TRANS and pw & c.r: n = max(n, 1)
            if pw & c.dpp: n = max(n, 2)
            if c.op.startswith('v_permlane') and pw & c.r: n = max(n, 2)
            if c.op.startswith(('v_readlane', 'v_readfirstlane')) and pw & c.r: n = max(n, 1)
            rd = set(c.r)
            if c.op.startswith('v_cndmask') and not sg(c.r): rd |= {'vcc_lo', 'vcc_hi'}
            if c.op in ('v_addc_co_u32', 'v_subb_co_u32'): rd |= {'vcc_lo', 'vcc_hi'}
            if ps & rd: n = max(n, 4 if c.op.startswith(('v_readlane', 'v_writelane')) else 2)
            if p.opsel and pw & (c.r | c.w): n = max(n, 1)
            if isdot and pw & (c.r | c.w):
                if c.op == p.op:
                    ops = [o.strip() for o in c.text.split(';')[0].split(None, 1)[1].split(',')]
                    ab = regs_of(ops[1].split()[0]) | regs_of(ops[2].split()[0])
                    if pw & ab: n = max(n, 3)
                else:
                    n = max(n, 3)
            if 'exec_lo' in ps and (c.dpp or c.op.startswith(('v_permlane', 'v_readlane', 'v_readfirstlane'))): n = max(n, 5)
        if c.kind in ('vmem', 'ds'):
            if ps & c.r: n = max(n, 5)
            if isdot and pw & c.r: n = max(n, 3)
            if p.op in TRANS and pw & c.r: n = max(n, 1)
        if c.kind == 'mfma' and 'exec_lo' in ps: n = max(n, 4)
    elif p.kind == 'mfma':
        big = 12 if p.passes == 8 else 8
        if c.kind == 'mfma':
            if p.D & c.C:
                if not (p.D == c.C and p.passes == c.passes): n = max(n, big - 2)
            if p.D & (c.A | c.B): n = max(n, big)
            if p.D & c.D and not (p.D == c.C): n = max(n, big)
        elif c.kind in ('valu', 'vmem', 'ds'):
            if p.D & (c.r | c.w): n = max(n, big)
            if c.kind == 'valu' and p.C & c.w: n = max(n, 7 if p.passes == 8 else 3)
            if c.kind in ('vmem', 'ds') and p.C & c.w: n = max(n, 7 if p.passes == 8 else 3)
    elif p.kind == 'salu':
        if 'm0' in p.w and (c.lds or 'addtid' in c.op): n = max(n, 1)
    elif p.kind == 'vmem':
        if p.wide and c.kind in ('valu', 'mfma') and p.data & c.w: n = max(n, 2)
        if p.wide and c.kind in ('vmem', 'ds') and p.data & c.w: n = max(n, 1)
    return n

def fix_hazards(lines, name=''):
    ins = [Ins(l) for l in lines]
    out = []
    nfix = 0
    def back(seq, c):
        d = 0; miss = 0
        for p in reversed(seq):
            if d >= 14: break
            if p.kind in ('none', 'label'): continue
            if p.op in ('s_branch', 's_endpgm'): break
            n = need(p, c)
            if n - d > miss: miss = n - d
            d += p.ws
        return miss
    for c in ins:
        if c.kind not in ('none', 'label'):
            m = back(out[-40:], c)
            if m > 0:
                out.append(Ins(f'    s_nop {m-1}'))
                nfix += m
        out.append(c)
    lab = {i.label: k for k, i in enumerate(out) if i.kind == 'label'}
    for k, b in enumerate(out):
        if b.target is not None:
            pre = out[max(0, k - 40):k] + [Ins('s_nop 0')]
            t = lab[b.target]
            seq = list(pre)
            cnt = 0
            for c in out[t:t + 40]:
                if c.kind in ('none', 'label'): continue
                m = back(seq, c)
                if m > 0:
                    raise RuntimeError(f'{name}: hazard across branch {b.text.strip()} -> {c.text.strip()} missing {m}')
                seq.append(c); cnt += c.ws
                if cnt > 14 or c.op in ('s_branch', 's_endpgm'): break
    return [i.text for i in out], nfix

class Kern:
    def __init__(self, name, grid, block, lds, vgpr, sgpr=96, agpr=0):
        self.name = name; self.grid = grid; self.block = block; self.lds = lds
        self.vgpr = vgpr; self.sgpr = sgpr; self.agpr = agpr
        self.lines = []
    def __call__(self, txt):
        for l in txt.split('\n'):
            l = l.strip()
            if not l: continue
            self.lines.append(l if l.endswith(':') and ' ' not in l else '    ' + l)
    def label(self, n):
        self.lines.append(f'{n}:')
    def srd(self, d, blo, size, off=0):
        if off:
            self(f's_add_u32 s{d}, s{blo}, {hex(off)}\ns_addc_u32 s{d+1}, s{blo+1}, 0')
        elif d != blo:
            self(f's_mov_b32 s{d}, s{blo}\ns_mov_b32 s{d+1}, s{blo+1}')
        self(f's_mov_b32 s{d+2}, {hex(size)}\ns_mov_b32 s{d+3}, 0x20000')
    def stamp(self):
        import os
        if os.environ.get('TL') and not getattr(self, 'tl0', 0):
            self.tl0 = 1
            self('s_memrealtime s[56:57]')
        if not os.environ.get('PROF'): return
        n = getattr(self, 'nst', 0); self.nst = n + 1
        assert n < 18
        if n == 0: self('s_memrealtime s[56:57]')
        self(f's_mem{"real" if os.environ.get("RT") else ""}time s[{60 + 2 * n}:{61 + 2 * n}]')
    def dump(self, slot, vt, keep=True):
        import os
        if os.environ.get('TL'):
            self(f'''
            s_waitcnt vmcnt(0)
            s_memrealtime s[58:59]
            s_load_dwordx2 s[48:49], s[0:1], 72
            s_or_b32 s50, s2, s3
            s_waitcnt lgkmcnt(0)
            s_cmp_lg_u32 s50, 0
            s_cbranch_scc1 TL_{self.name}_{len(self.lines)}
            s_mov_b64 exec, 1
            s_nop 0
            s_and_b32 s50, s48, 0xe00
            s_add_u32 s44, s20, 0xe00000
            s_addc_u32 s45, s21, 0
            s_mov_b32 s46, 64
            s_mov_b32 s47, 0x20000
            s_lshr_b32 s50, s50, 6
            v_mov_b32 v{vt}, 0
            v_mov_b32 v{vt + 1}, s56
            buffer_store_dword v{vt + 1}, v{vt}, s[44:47], s50 offen
            v_mov_b32 v{vt + 1}, s58
            buffer_store_dword v{vt + 1}, v{vt}, s[44:47], s50 offen offset:4
            '''.replace('@L', ''))
            lab = self.lines[-14].split()[-1]
            if self.name == 'a2_kernel':
                self(f'''
                s_mov_b64 exec, 0xffff
                v_lshlrev_b32 v{vt}, 2, v0
                s_waitcnt vmcnt(0)
                buffer_load_dword v{vt + 1}, v{vt}, s[44:47], 0 offen sc1
                s_mov_b32 s50, 64
                s_mov_b32 s51, 0x20000
                s_waitcnt vmcnt(0)
                buffer_store_dword v{vt + 1}, v{vt}, s[48:51], 0 offen
                s_sub_u32 s48, s48, 3072
                s_subb_u32 s49, s49, 0
                buffer_store_dword v{vt + 1}, v{vt}, s[48:51], 0 offen
                ''')
            self.label(lab)
        if not os.environ.get('PROF'): return
        self('s_waitcnt vmcnt(0)')
        self.stamp()
        self('s_memrealtime s[58:59]')
        self('s_load_dwordx2 s[48:49], s[0:1], 72')
        self('s_mov_b64 exec, 1\ns_waitcnt lgkmcnt(0) vmcnt(0)')
        self.srd(44, 48, 1 << 19)
        self(f's_lshl_b32 s48, s2, 3\ns_add_u32 s48, s48, s3\ns_lshl_b32 s48, s48, 7\nv_mov_b32 v{vt}, 0')
        self(f'v_mov_b32 v{vt + 1}, s56\nbuffer_store_dword v{vt + 1}, v{vt}, s[44:47], s48 offen offset:120')
        self(f'v_mov_b32 v{vt + 1}, s58\nbuffer_store_dword v{vt + 1}, v{vt}, s[44:47], s48 offen offset:124')
        self(f'v_mov_b32 v{vt + 1}, {slot}\nbuffer_store_dword v{vt + 1}, v{vt}, s[44:47], s48 offen offset:116')
        if getattr(self, 'rs', 0):
            self(f's_sub_u32 s96, s98, s96\nv_mov_b32 v{vt + 1}, s96\nbuffer_store_dword v{vt + 1}, v{vt}, s[44:47], s48 offen offset:112')
        for n in range(self.nst):
            self(f'v_mov_b32 v{vt + 1}, s{60 + 2 * n}\nbuffer_store_dword v{vt + 1}, v{vt}, s[44:47], s48 offen offset:{4 * n}')
        self.nst -= 1
    def rstamp(self, i):
        import os
        if not os.environ.get('PROF'): return
        self.sgpr = 102; self.rs = 1
        self(f's_memrealtime s[{96 + 2 * i}:{97 + 2 * i}]')
    def setstamp(self, n):
        self.nst = n
    def text(self):
        body, nf = fix_hazards(self.lines, self.name)
        mx = 0
        for l in body:
            for m in re.finditer(r'\bv\[?(\d+)(?::(\d+))?', l.split(';')[0]):
                mx = max(mx, int(m.group(2) or m.group(1)))
        assert mx < self.vgpr, (self.name, mx, self.vgpr)
        self.info = f'{self.name}: {len(body)} lines, {nf} nop states inserted, max v{mx}'
        return f'.globl {self.name}\n.p2align 8\n.type {self.name},@function\n{self.name}:\n' + '\n'.join(body) + '\n'
    def desc(self):
        acc = (self.vgpr + 3) // 4 * 4
        return f'''.p2align 6
.amdhsa_kernel {self.name}
  .amdhsa_next_free_vgpr {acc + self.agpr}
  .amdhsa_next_free_sgpr {self.sgpr}
  .amdhsa_accum_offset {acc}
  .amdhsa_group_segment_fixed_size 0
  .amdhsa_kernarg_size 88
  .amdhsa_user_sgpr_count 2
  .amdhsa_user_sgpr_kernarg_segment_ptr 1
  .amdhsa_system_sgpr_workgroup_id_x 1
.end_amdhsa_kernel
'''
```

```python
from asmlib import *
from layout import *
import math

PITCH = 1056
STAT = 64 * PITCH
S0_LDS = STAT + 256
N_MAIN, N_WO, N_WQ, N_KV, N_FT, N_WOF = 256, 64, 64, 8, 0, 32
S0_GRID = N_MAIN + N_WO + N_WQ + N_KV + N_FT + N_WOF

VL, VI, VG = 0, 2, 3

def fgen(k, F, T, alpha, beta, scale, zero_dc, vsgn=None):
    fp, f, ph, amp, w, a0 = T + 24, T + 25, T + 26, T + 27, T + 28, T + 29
    C = [T, T + 8, T + 16]
    k(f'''
    s_lshl_b32 s22, s31, 6
    s_lshl_b32 s23, s3, 4
    s_add_u32 s22, s22, s23
    v_add_u32 {v(fp)}, s22, {v(VI)}
    v_lshrrev_b32 {v(f)}, 1, {v(fp)}
    v_and_b32 {v(ph)}, 1, {v(fp)}
    v_cvt_f32_u32 {v(ph)}, {v(ph)}
    v_mul_f32 {v(ph)}, 0.25, {v(ph)}
    v_mov_b32 {v(w)}, 0x100
    v_cmp_eq_u32 vcc, 1, {v(fp)}
    v_mov_b32 {v(amp)}, {fl(scale / 16)}
    v_mov_b32 {v(a0)}, {fl(scale / math.sqrt(512))}
    v_cndmask_b32 {v(f)}, {v(f)}, {v(w)}, vcc
    v_cndmask_b32 {v(ph)}, {v(ph)}, 0, vcc
    v_cmp_gt_u32 vcc, 2, {v(fp)}
    v_cvt_f32_u32 {v(w)}, {v(f)}
    v_mul_f32 {v(w)}, {fl(1 / 512)}, {v(w)}
    v_cndmask_b32 {v(amp)}, {v(amp)}, {v(a0)}, vcc
    ''')
    if zero_dc:
        k(f'''
        v_cmp_eq_u32 vcc, 0, {v(fp)}
        s_nop 1
        v_cndmask_b32 {v(amp)}, {v(amp)}, 0, vcc
        ''')
    if vsgn is not None:
        k(f'''
        v_lshlrev_b32 {v(vsgn)}, 31, {v(f)}
        v_or_b32 {v(vsgn)}, 1.0, {v(vsgn)}
        ''')
    k(f'''
    v_cvt_f32_u32 {v(a0)}, {v(VG)}
    v_mul_f32 {v(a0)}, {fl(alpha)}, {v(a0)}
    v_fma_f32 {v(a0)}, {v(a0)}, {v(w)}, {v(ph)}
    ''')
    for kk in range(2):
        for j in range(8):
            d = 32 * kk + (j % 4) + beta * (j // 4)
            k(f'v_fmamk_f32 {v(C[kk] + j)}, {v(w)}, {fl(d)}, {v(a0)}')
        for j in range(8):
            k(f'v_fract_f32 {v(C[kk] + j)}, {v(C[kk] + j)}')
        for j in range(8):
            k(f'v_cos_f32 {v(C[kk] + j)}, {v(C[kk] + j)}')
        for j in range(8):
            k(f'v_mul_f32 {v(C[kk] + j)}, {v(amp)}, {v(C[kk] + j)}')
        for j in range(4):
            k(f'v_cvt_pk_bf16_f32 {v(F + 4 * kk + j)}, {v(C[kk] + 2 * j)}, {v(C[kk] + 2 * j + 1)}')
    m = ph
    k(f'''
    v_mul_f32 {v(m)}, {fl(32.0)}, {v(w)}
    v_fract_f32 {v(m)}, {v(m)}
    v_cos_f32 {v(m)}, {v(m)}
    s_nop 0
    v_add_f32 {v(m)}, {v(m)}, {v(m)}
    ''')
    for kk in range(2, 8):
        c0, c1, c2 = C[kk % 3], C[(kk - 1) % 3], C[(kk - 2) % 3]
        for j in range(8):
            k(f'v_fma_f32 {v(c0 + j)}, {v(m)}, {v(c1 + j)}, -{v(c2 + j)}')
        for j in range(4):
            k(f'v_cvt_pk_bf16_f32 {v(F + 4 * kk + j)}, {v(c0 + 2 * j)}, {v(c0 + 2 * j + 1)}')

def s0_rows(k, main):
    F = 8; ACC = 40; BUF = 72; T = 72
    ONES = 104; ACCS = 108; SQ = 112; WTR = 116; AD = 124; SGN = 128; VT = 129; VT2 = 130; VT3 = 131; WTH = 132
    NB = 8
    if main:
        k('''
        s_and_b32 s22, s2, 7
        s_lshl_b32 s22, s22, 2
        s_lshr_b32 s23, s2, 3
        s_and_b32 s23, s23, 3
        s_add_u32 s37, s22, s23          ; rb
        s_lshr_b32 s31, s2, 5            ; cb
        s_lshr_b32 s22, s37, 4
        s_lshl_b32 s28, s22, 10          ; 1024*kappa
        s_lshr_b32 s22, s37, 1
        s_and_b32 s22, s22, 3
        s_lshl_b32 s22, s22, 8
        s_add_u32 s28, s28, s22          ; +256 gg
        s_and_b32 s22, s37, 8
        s_lshl_b32 s22, s22, 1
        s_add_u32 s28, s28, s22          ; +16 t
        s_and_b32 s22, s37, 1
        s_lshl_b32 s22, s22, 3
        s_add_u32 s28, s28, s22          ; +8 i3
        s_and_b32 s22, s3, 1
        s_lshl_b32 s22, s22, 7
        s_add_u32 s28, s28, s22
        s_lshr_b32 s22, s3, 1
        s_add_u32 s28, s28, s22
        s_lshl_b32 s28, s28, 10
        ''')
        A_, B_ = 32768, 2048
        k('s_waitcnt lgkmcnt(0)')
        k.srd(24, 4, 2 * MB)
    else:
        k('''
        s_sub_u32 s22, s2, 256
        s_lshr_b32 s37, s22, 3
        s_and_b32 s31, s22, 7            ; cb
        s_lshl_b32 s28, s37, 6
        s_lshr_b32 s22, s3, 1
        s_lshl_b32 s22, s22, 5
        s_add_u32 s28, s28, s22
        s_and_b32 s22, s3, 1
        s_lshl_b32 s22, s22, 2
        s_add_u32 s28, s28, s22
        s_lshl_b32 s28, s28, 10
        ''')
        A_, B_ = 1024, 8192
        k('s_waitcnt lgkmcnt(0)')
        k.srd(24, 18, 512 * 1024)
    k(f'''
    v_lshlrev_b32 v4, 4, {v(VL)}
    s_mul_i32 s32, s3, {16 * PITCH}
    s_mov_b32 m0, s32
    ''')
    for m in range(16):
        if m:
            k(f's_add_u32 m0, m0, {PITCH}')
            d = A_ if m % 4 else B_ - 3 * A_
            k(f's_add_u32 s28, s28, {d & 0xffffffff:#x}')
        else:
            k('s_nop 0')
        k('buffer_load_dwordx4 v4, s[24:27], s28 offen lds')
    if main:
        k.srd(40, 6, 2048 * 514 + 4)
        k.srd(44, 8, 2048 * 514 + 4)
        k(f'''
        s_and_b32 s22, s2, 3
        s_lshl_b32 s22, s22, 6
        v_add_u32 {v(VT)}, s22, {v(VL)}          ; f
        v_mov_b32 {v(VT2)}, 0x100
        v_cmp_eq_u32 vcc, 0, {v(VT)}
        s_lshr_b32 s22, s2, 2
        s_and_b32 s23, s22, 7                 ; k1b
        v_cndmask_b32 {v(VT2)}, {v(VT)}, {v(VT2)}, vcc
        v_lshlrev_b32 {v(VT2)}, 1, {v(VT2)}
        v_lshlrev_b32 {v(VT)}, 13, {v(VT)}
        s_lshr_b32 s22, s22, 3                ; k2b
        s_lshl_b32 s23, s23, 3
        s_lshl_b32 s33, s3, 1
        s_add_u32 s23, s23, s33               ; k1 (e=0)
        s_lshl_b32 s33, s22, 8
        s_add_u32 s33, s33, s23
        s_mul_i32 s33, s33, 514
        ''')
        for r in range(4):
            if r: k(f's_add_u32 s33, s33, {64 * 514}')
            for e in range(2):
                k(f'buffer_load_ushort {v(WTR + 4 * e + r)}, {v(VT2)}, s[40:43], s33 offen offset:{514 * e}')
                k(f'buffer_load_ushort {v(WTH + 4 * e + r)}, {v(VT2)}, s[44:47], s33 offen offset:{514 * e}')
        k('''
        s_lshr_b32 s33, s23, 4
        s_lshl_b32 s33, s33, 11
        s_and_b32 s23, s23, 15
        s_lshl_b32 s23, s23, 4
        s_add_u32 s33, s33, s23
        s_lshl_b32 s22, s22, 8
        s_add_u32 s38, s33, s22
        ''')
    k.setstamp(1); k.stamp()
    fgen(k, F, T, 8.0, 4, 1.0, False, SGN)
    k.stamp()
    k(f'''
    v_mul_u32_u24 {v(VT3)}, {PITCH}, {v(VI)}
    v_lshl_add_u32 {v(VT3)}, {v(VG)}, 4, {v(VT3)}
    ''')
    if main:
        for u in range(4):
            k(f's_xor_b32 s22, s3, {u}\ns_mul_i32 s22, s22, {16 * PITCH}\nv_add_u32 {v(AD + u)}, s22, {v(VT3)}')
        for j in range(4):
            k(f'v_mov_b32 {v(ONES + j)}, 0x3f803f80\nv_mov_b32 {v(SQ + j)}, 0')
        k('s_waitcnt vmcnt(16)')
    else:
        k('s_waitcnt vmcnt(0)')
    k.stamp()
    k('s_barrier')
    k.stamp()
    reads = [(kk, u) for kk in range(16) for u in range(4)]
    def rd(n):
        kk, u = reads[n]
        if main:
            k(f'ds_read_b128 {v(BUF + 4 * (n % NB), 4)}, {v(AD + u)} offset:{64 * kk}')
        else:
            k(f'ds_read_b128 {v(BUF + 4 * (n % NB), 4)}, {v(VT3)} offset:{64 * kk + 16 * PITCH * u}')
    for n in range(NB): rd(n)
    for n, (kk, u) in enumerate(reads):
        out = min(NB, len(reads) - n)
        k(f's_waitcnt lgkmcnt({out - 1})')
        acc = ACC + 16 * (kk // 8) + 4 * u
        b = BUF + 4 * (n % NB)
        k(f'v_mfma_f32_16x16x32_bf16 {v(acc, 4)}, {v(b, 4)}, {v(F + 4 * (kk % 8), 4)}, {"0" if kk % 8 == 0 else v(acc, 4)}')
        if main and u == 0:
            k(f'v_mfma_f32_16x16x32_bf16 {v(ACCS, 4)}, {v(ONES, 4)}, {v(b, 4)}, {"0" if kk == 0 else v(ACCS, 4)}')
            for j in range(4):
                k(f'v_dot2c_f32_bf16 {v(SQ + j)}, {v(b + j)}, {v(b + j)}')
        if n + NB < len(reads): rd(n + NB)
    k.stamp()
    if main:
        t = BUF
        k(f'''
        v_add_f32 {v(SQ)}, {v(SQ)}, {v(SQ + 1)}
        v_add_f32 {v(SQ + 2)}, {v(SQ + 2)}, {v(SQ + 3)}
        v_add_f32 {v(SQ)}, {v(SQ)}, {v(SQ + 2)}
        v_mov_b32 {v(t)}, {v(SQ)}
        v_permlane32_swap_b32 {v(SQ)}, {v(t)}
        v_add_f32 {v(SQ)}, {v(SQ)}, {v(t)}
        v_mov_b32 {v(t)}, {v(SQ)}
        v_permlane16_swap_b32 {v(SQ)}, {v(t)}
        v_add_f32 {v(SQ)}, {v(SQ)}, {v(t)}
        v_mov_b32 {v(t + 1)}, {fl(1e-5)}
        v_fmamk_f32 {v(SQ)}, {v(SQ)}, {fl(1 / 512)}, {v(t + 1)}
        v_mul_f32 {v(t)}, {fl(1 / 512)}, {v(ACCS)}
        v_fma_f32 {v(SQ)}, -{v(t)}, {v(t)}, {v(SQ)}
        v_rsq_f32 {v(t)}, {v(SQ)}
        s_lshl_b32 s22, s3, 6
        s_add_u32 s22, s22, {STAT}
        v_lshl_add_u32 {v(t + 1)}, {v(VI)}, 2, s22
        ds_write_b32 {v(t + 1)}, {v(t)}
        v_mul_f32 {v(SQ)}, {v(SQ)}, {v(t)}
        v_lshl_add_u32 {v(t + 2)}, {v(VG)}, 4, s22
        ''')
        for r in range(16):
            k(f'v_fma_f32 {v(ACC + r)}, {v(ACC + 16 + r)}, {v(SGN)}, {v(ACC + r)}')
        k('s_waitcnt lgkmcnt(0)\ns_barrier')
        RS = ACC + 16
        for u in range(4):
            k(f'v_xor_b32 {v(t + 3)}, {64 * u}, {v(t + 2)}')
            k(f'ds_read_b128 {v(RS + 4 * u, 4)}, {v(t + 3)}')
        k.srd(48, 20, ZSIZE, Z_OFF)
        k.srd(52, 20, 2 * MB, WT_OFF)
        k(f'''
        s_lshl_b32 s22, s31, 6
        s_lshl_b32 s23, s3, 4
        s_add_u32 s22, s22, s23
        v_add_u32 {v(t + 4)}, s22, {v(VI)}
        v_mul_u32_u24 {v(t + 4)}, {ZP}, {v(t + 4)}
        v_lshl_add_u32 {v(t + 4)}, {v(VG)}, 5, {v(t + 4)}
        s_lshl_b32 s23, s37, 7
        ''')
        for u in range(4):
            k(f's_waitcnt lgkmcnt({3 - u})')
            for r in range(4):
                k(f'v_mul_f32 {v(ACC + 4 * u + r)}, {v(ACC + 4 * u + r)}, {v(RS + 4 * u + r)}')
            k(f'v_cvt_pk_bf16_f32 {v(ACC + 4 * u)}, {v(ACC + 4 * u)}, {v(ACC + 4 * u + 1)}')
            k(f'v_cvt_pk_bf16_f32 {v(ACC + 4 * u + 1)}, {v(ACC + 4 * u + 2)}, {v(ACC + 4 * u + 3)}')
            k(f's_xor_b32 s22, s3, {u}\ns_lshl_b32 s22, s22, 3\ns_add_u32 s22, s22, s23')
            k(f'buffer_store_dwordx2 {v(ACC + 4 * u, 2)}, {v(t + 4)}, s[48:51], s22 offen')
        k('s_waitcnt vmcnt(4)')
        for r in range(8):
            k(f'v_lshl_or_b32 {v(WTR + r)}, {v(WTH + r)}, 16, {v(WTR + r)}')
        k(f'''
        buffer_store_dwordx4 {v(WTR, 4)}, {v(VT)}, s[52:55], s38 offen
        buffer_store_dwordx4 {v(WTR + 4, 4)}, {v(VT)}, s[52:55], s38 offen offset:16
        ''')
        k.stamp()
        k.dump(0, F)
        k('''
        s_mov_b64 exec, -1
        s_cmp_lg_u32 s31, 0
        s_cbranch_scc1 S0_END
        ''')
        k.srd(48, 20, 8192, STD_OFF)
        k(f'''
        v_lshrrev_b32 {v(t + 5)}, 2, {v(VI)}
        v_lshlrev_b32 {v(t + 5)}, 4, {v(t + 5)}
        v_and_b32 {v(t + 6)}, 3, {v(VI)}
        v_add_u32 {v(t + 5)}, {v(t + 5)}, {v(t + 6)}
        v_lshlrev_b32 {v(t + 5)}, 2, {v(t + 5)}
        s_lshl_b32 s22, s37, 8
        s_lshl_b32 s23, s3, 4
        s_add_u32 s22, s22, s23
        buffer_store_dword {v(SQ)}, {v(t + 5)}, s[48:51], s22 offen
        s_endpgm
        ''')
    else:
        k.srd(48, 20, 512 * 1024, WOP_OFF)
        k('''
        s_lshl_b32 s22, s37, 3
        s_add_u32 s22, s22, s31
        s_lshl_b32 s22, s22, 2
        s_add_u32 s22, s22, s3
        s_lshl_b32 s22, s22, 11
        ''')
        for r in range(16):
            k(f'v_fma_f32 {v(ACC + r)}, {v(ACC + 16 + r)}, {v(SGN)}, {v(ACC + r)}')
        for r in range(8):
            k(f'v_cvt_pk_bf16_f32 {v(ACC + 16 + r)}, {v(ACC + 2 * r)}, {v(ACC + 2 * r + 1)}')
        k(f'''
        buffer_store_dwordx4 {v(ACC + 16, 4)}, v4, s[48:51], s22 offen
        buffer_store_dwordx4 {v(ACC + 20, 4)}, v4, s[48:51], s22 offen offset:1024
        ''')
        k.stamp()
        k.dump(1, F)
        k('s_endpgm')

def s0_cols(k, isq):
    F = 8; ACC = 40; BUF = 72; T = 72; AD = 124; VT = 129; VT2 = 130
    NT = 4 if isq else 2
    NB = 8 if isq else 4
    if isq:
        k(f'''
        s_sub_u32 s22, s2, {N_MAIN + N_WO}
        s_lshr_b32 s31, s22, 3           ; f' block
        s_and_b32 s37, s22, 7            ; n block
        v_lshrrev_b32 {v(VT)}, 3, {v(VL)}      ; row
        v_lshrrev_b32 {v(VT2)}, 4, {v(VL)}     ; sigma
        v_lshlrev_b32 {v(VT2)}, 1, {v(VT2)}
        v_and_b32 v4, 7, {v(VL)}
        v_xor_b32 v4, v4, {v(VT2)}
        v_lshlrev_b32 v4, 4, v4
        v_lshl_add_u32 v4, {v(VT)}, 10, v4
        s_lshl_b32 s28, s37, 7
        s_lshl_b32 s22, s3, 13
        s_add_u32 s28, s28, s22
        s_lshl_b32 s32, s3, 10
        s_mov_b32 m0, s32
        s_waitcnt lgkmcnt(0)
        ''')
        k.srd(24, 12, 512 * 1024)
        for m in range(16):
            if m:
                k('s_add_u32 m0, m0, 4096\ns_add_u32 s28, s28, 32768')
            k('buffer_load_dwordx4 v4, s[24:27], s28 offen lds')
        rp = 128
    else:
        k(f'''
        s_sub_u32 s31, s2, {N_MAIN + N_WO + N_WQ}
        v_lshlrev_b32 v4, 4, {v(VL)}
        s_lshl_b32 s28, s3, 12
        s_mov_b32 m0, s28
        s_waitcnt lgkmcnt(0)
        ''')
        k.srd(24, 14, 16384)
        k.srd(40, 16, 16384)
        for m in range(4):
            k(f'buffer_load_dwordx4 v4, s[24:27], s28 offen offset:{1024 * m} lds')
        k('s_add_u32 m0, m0, 16384\ns_nop 0')
        for m in range(4):
            k(f'buffer_load_dwordx4 v4, s[40:43], s28 offen offset:{1024 * m} lds')
        rp = 32
    k.setstamp(1); k.stamp()
    fgen(k, F, T, 4.0, 16, QSCALE if isq else 1.0, True)
    k.stamp()
    k(f'''
    v_lshrrev_b32 {v(VT)}, 2, {v(VL)}       ; 4g + r
    v_and_b32 {v(VT2)}, 3, {v(VL)}
    v_lshlrev_b32 {v(VT2)}, 3, {v(VT2)}
    v_mul_u32_u24 {v(AD)}, {rp}, {v(VT)}
    v_add_u32 {v(AD)}, {v(AD)}, {v(VT2)}
    ''')
    if isq:
        k(f'''
        v_lshrrev_b32 {v(VT)}, 1, {v(VT)}
        v_and_b32 {v(VT)}, 3, {v(VT)}
        v_lshl_add_u32 {v(AD)}, {v(VT)}, 5, {v(AD)}
        ''')
        for t in range(1, 4):
            k(f'v_xor_b32 {v(AD + t)}, {32 * t}, {v(AD)}')
    k('s_waitcnt vmcnt(0)')
    k.stamp()
    k('s_barrier')
    k.stamp()
    reads = [(kk, t) for kk in range(16) for t in range(NT)]
    NBB = 7 if isq else 4
    def rd(n):
        kk, t = reads[n]
        b = BUF + 4 * (n % NBB)
        for hf in range(2):
            if isq:
                k(f'ds_read_b64_tr_b16 {v(b + 2 * hf, 2)}, {v(AD + t)} offset:{(32 * kk + 16 * hf) * rp}')
            else:
                k(f'ds_read_b64_tr_b16 {v(b + 2 * hf, 2)}, {v(AD)} offset:{(32 * kk + 16 * hf) * rp + 16384 * t}')
    for n in range(NBB): rd(n)
    for n, (kk, t) in enumerate(reads):
        out = min(NBB, len(reads) - n)
        k(f's_waitcnt lgkmcnt({2 * (out - 1)})')
        acc = ACC + 16 * (kk // 8) + 4 * t
        b = BUF + 4 * (n % NBB)
        k(f'v_mfma_f32_16x16x32_bf16 {v(acc, 4)}, {v(F + 4 * (kk % 8), 4)}, {v(b, 4)}, {"0" if kk % 8 == 0 else v(acc, 4)}')
        if n + NBB < len(reads): rd(n + NBB)
    k.stamp()
    k.srd(48, 20, WQ_SIZE, WQ_OFF)
    k(f'''
    v_lshlrev_b32 v4, 4, {v(VL)}
    s_lshl_b32 s22, s31, 1
    s_lshr_b32 s23, s3, 1
    s_add_u32 s22, s22, s23
    s_lshl_b32 s22, s22, 10
    s_and_b32 s23, s3, 1
    s_lshl_b32 s23, s23, 3
    s_add_u32 s22, s22, s23
    ''')
    if isq:
        k('s_lshl_b32 s23, s37, 16\ns_add_u32 s22, s22, s23')
    else:
        k(f's_add_u32 s22, s22, {32 * 16384}')
    for t in range(NT):
        for r in range(4):
            op = 'v_add_f32' if r < 2 else 'v_sub_f32'
            k(f'{op} {v(ACC + 4 * t + r)}, {v(ACC + 4 * t + r)}, {v(ACC + 16 + 4 * t + r)}')
        k(f'v_cvt_pk_bf16_f32 {v(ACC + 4 * t)}, {v(ACC + 4 * t)}, {v(ACC + 4 * t + 1)}')
        k(f'v_cvt_pk_bf16_f32 {v(ACC + 4 * t + 1)}, {v(ACC + 4 * t + 2)}, {v(ACC + 4 * t + 3)}')
        k(f'buffer_store_dwordx2 {v(ACC + 4 * t, 2)}, v4, s[48:51], s22 offen')
        if t + 1 < NT: k('s_add_u32 s22, s22, 16384')
    k.stamp()
    k.dump(2 if isq else 3, F)
    k('s_endpgm')

def s0_ft(k):
    base = N_MAIN + N_WO + N_WQ + N_KV
    D, FB, TT, OUT = 8, 9, 10, 20
    k(f'''
    s_sub_u32 s22, s2, {base}
    s_lshl_b32 s22, s22, 2
    s_add_u32 s22, s22, s3
    s_lshr_b32 s23, s22, 3
    s_lshl_b32 s23, s23, 4
    v_add_u32 {v(D)}, s23, {v(VI)}              ; d
    s_and_b32 s23, s22, 7
    s_lshl_b32 s23, s23, 5                      ; 16*kappa0
    v_lshl_add_u32 {v(FB)}, {v(VG)}, 1, s23     ; f base
    s_lshl_b32 s22, s22, 11
    s_add_u32 s22, s22, {34 * 16384}
    v_lshlrev_b32 v4, 4, {v(VL)}
    s_waitcnt lgkmcnt(0)
    ''')
    k.srd(48, 20, WQ_SIZE, WQ_OFF)
    for e in range(2):
        for q in range(4):
            off = 16 * e + 8 * (q // 2) + (q % 2)
            k(f'''
            v_add_u32 {v(TT)}, {off}, {v(FB)}
            v_mul_u32_u24 {v(TT)}, {v(TT)}, {v(D)}
            v_and_b32 {v(TT)}, 0x1ff, {v(TT)}
            v_cvt_f32_u32 {v(TT)}, {v(TT)}
            v_mul_f32 {v(TT)}, {fl(1 / 512)}, {v(TT)}
            v_cos_f32 {v(TT + 1)}, {v(TT)}
            v_sin_f32 {v(TT + 2)}, {v(TT)}
            v_mul_f32 {v(TT + 1)}, {fl(1 / 16)}, {v(TT + 1)}
            v_mul_f32 {v(TT + 2)}, {fl(-1 / 16)}, {v(TT + 2)}
            v_cvt_pk_bf16_f32 {v(OUT + 4 * e + q)}, {v(TT + 1)}, {v(TT + 2)}
            ''')
    bfv = BF16_RS512
    k(f'''
    v_lshlrev_b32 {v(TT)}, 31, {v(D)}
    v_or_b32 {v(TT)}, {bfv | (bfv << 16):#x}, {v(TT)}
    v_cmp_eq_u32 vcc, 0, {v(FB)}
    s_nop 1
    v_cndmask_b32 {v(OUT)}, {v(OUT)}, {v(TT)}, vcc
    buffer_store_dwordx4 {v(OUT, 4)}, v4, s[48:51], s22 offen
    buffer_store_dwordx4 {v(OUT + 4, 4)}, v4, s[48:51], s22 offen offset:1024
    ''')
    k.setstamp(1); k.stamp()
    k.dump(4, 8)
    k('s_endpgm')

def s0_wof(k):
    base = N_MAIN + N_WO + N_WQ + N_KV + N_FT
    R = 8
    k(f'''
    s_sub_u32 s22, s2, {base}
    s_lshl_b32 s22, s22, 2
    s_add_u32 s22, s22, s3
    s_lshr_b32 s23, s22, 4
    s_lshl_b32 s28, s23, 16             ; cb*64*1024
    s_and_b32 s23, s22, 1
    s_lshl_b32 s29, s23, 15
    s_add_u32 s28, s28, s29
    s_lshl_b32 s30, s23, 10
    s_lshr_b32 s23, s22, 1
    s_lshl_b32 s29, s23, 13
    s_add_u32 s30, s30, s29             ; (cb*8+wa)*8192
    s_and_b32 s23, s23, 7
    s_lshl_b32 s23, s23, 7
    s_add_u32 s28, s28, s23
    v_lshlrev_b32 v4, 1, {v(VL)}
    v_lshrrev_b32 v5, 2, {v(VL)}
    v_and_b32 v5, 3, v5
    v_lshlrev_b32 v5, 11, v5            ; n*2048
    v_and_b32 v6, 3, {v(VL)}
    v_lshl_add_u32 v6, {v(VG)}, 2, v6   ; i
    v_lshl_add_u32 v5, v6, 4, v5
    s_waitcnt lgkmcnt(0)
    ''')
    k.srd(24, 18, 512 * 1024)
    k.srd(48, 20, 512 * 1024, WOF_OFF)
    for g in range(4):
        for jj in range(2):
            for j in range(4):
                k(f'buffer_load_ushort {v(R + 16 * (j % 2) + 4 * g + 2 * jj + j // 2)}, v4, s[24:27], s28 offen offset:{1024 * j}')
            k('s_add_u32 s28, s28, 4096')
    for g in range(4):
        k(f's_waitcnt vmcnt({8 * (3 - g) + g})')
        for r in range(4):
            k(f'v_lshl_or_b32 {v(R + 4 * g + r)}, {v(R + 16 + 4 * g + r)}, 16, {v(R + 4 * g + r)}')
        k(f'buffer_store_dwordx4 {v(R + 4 * g, 4)}, v5, s[48:51], s30 offen offset:{256 * g}')
    k.setstamp(1); k.stamp()
    k.dump(5, 60)
    k('s_endpgm')

def build():
    k = Kern('s0_kernel', S0_GRID, 256, S0_LDS, 140)
    k.stamp()
    k(f'''
    s_load_dwordx16 s[4:19], s[0:1], 0
    s_load_dwordx2 s[20:21], s[0:1], 80
    v_lshrrev_b32 v1, 6, v0
    v_and_b32 v0, 63, v0
    v_readfirstlane_b32 s3, v1
    v_and_b32 {v(VI)}, 15, v0
    v_lshrrev_b32 {v(VG)}, 4, v0
    s_cmp_ge_u32 s2, {N_MAIN}
    s_cbranch_scc1 S0_X
    ''')
    s0_rows(k, True)
    k.label('S0_X')
    k(f's_cmp_ge_u32 s2, {N_MAIN + N_WO}\ns_cbranch_scc1 S0_Y')
    s0_rows(k, False)
    k.label('S0_Y')
    k(f's_cmp_ge_u32 s2, {N_MAIN + N_WO + N_WQ}\ns_cbranch_scc1 S0_KV')
    s0_cols(k, True)
    k.label('S0_KV')
    k(f's_cmp_ge_u32 s2, {N_MAIN + N_WO + N_WQ + N_KV}\ns_cbranch_scc1 S0_FT')
    s0_cols(k, False)
    k.label('S0_FT')
    k(f's_cmp_ge_u32 s2, {S0_GRID}\ns_cbranch_scc1 S0_END')
    s0_wof(k)
    k.label('S0_END')
    k('s_endpgm')
    return k
```

```python
import math
MB = 1 << 20
Z_OFF = 0
import os
ZP = int(os.environ.get('ZP', 4224))
ZSIZE = 512 * ZP
TP = 65536 + 256
XBSIZE = 32 * TP
XB_OFF = 0x240000
QF_OFF = 0x480000
X3_OFF = 0x680000
WT_OFF = 0x880000
WQ_OFF = 0xA80000
WQ_SIZE = 34 * 16384
WOP_OFF = 12 * MB
WOF_OFF = 12 * MB + 512 * 1024
KT_OFF = 13 * MB
VT_OFF = KT_OFF + 65536
STD_OFF = KT_OFF + 131072
WS_USED = STD_OFF + 8192
QSCALE = 0.25 * math.log2(math.e)
import struct
def _bf16(x):
    u = struct.unpack('<I', struct.pack('<f', x))[0]
    return (u + 0x7fff + ((u >> 16) & 1)) >> 16
BF16_RS512 = _bf16(1 / math.sqrt(512))
```

```python
import sys
kernels = []
def kern(name, body, iters, waves, vgpr=128, pre='', lds=0, grid=256):
    s = f'''
.globl {name}
.p2align 8
.type {name},@function
{name}:
    s_load_dwordx2 s[4:5], s[0:1], 0
    s_load_dwordx2 s[6:7], s[0:1], 8
    s_load_dwordx2 s[24:25], s[0:1], 16
    v_lshrrev_b32 v1, 6, v0
    s_nop 0
    v_readfirstlane_b32 s20, v1
    s_waitcnt lgkmcnt(0)
    s_mov_b32 s8, s6
    s_mov_b32 s9, s7
    s_mov_b32 s10, 0x100000
    s_mov_b32 s11, 0x20000
'''
    for i in range(2, vgpr):
        s += f'    v_mov_b32 v{i}, 0x3f000000\n' if i % 2 else f'    v_cvt_f32_u32 v{i}, v0\n'
    for i in range(2, vgpr, 2):
        s += f'    v_mul_f32 v{i}, 0x3a000000, v{i}\n'
    s += pre
    s += f'''
    s_mov_b32 s21, {iters}
    s_barrier
    s_memtime s[12:13]
    s_memrealtime s[16:17]
    s_waitcnt lgkmcnt(0)
.p2align 6
L_{name}:
{body}
    s_sub_u32 s21, s21, 1
    s_cmp_lg_u32 s21, 0
    s_cbranch_scc1 L_{name}
    s_nop 15
    s_memtime s[14:15]
    s_memrealtime s[18:19]
    s_waitcnt lgkmcnt(0)
    s_sub_u32 s14, s14, s12
    s_sub_u32 s18, s18, s16
    s_mul_i32 s22, s2, {waves}
    s_add_u32 s22, s22, s20
    s_lshl_b32 s22, s22, 3
    v_mov_b32 v2, s14
    v_mov_b32 v3, s18
    v_mov_b32 v4, s22
    buffer_store_dwordx2 v[2:3], v4, s[8:11], 0 offen
    s_waitcnt vmcnt(0)
    s_endpgm
'''
    d = f'''
.amdhsa_kernel {name}
  .amdhsa_next_free_vgpr {vgpr}
  .amdhsa_next_free_sgpr 40
  .amdhsa_accum_offset {vgpr}
  .amdhsa_group_segment_fixed_size 0
  .amdhsa_kernarg_size 24
  .amdhsa_user_sgpr_count 2
  .amdhsa_user_sgpr_kernarg_segment_ptr 1
  .amdhsa_system_sgpr_workgroup_id_x 1
.end_amdhsa_kernel
'''
    kernels.append((name, waves, s, d, lds, grid))

def emit(path):
    hdr = ''.join(f'; @launch kernel={n} grid=({g},1,1) block=({w*64},1,1) lds={lds}\n' for n, w, _, _, lds, g in kernels)
    hdr += '.amdgcn_target "amdgcn-amd-amdhsa--gfx950"\n.text\n'
    out = hdr + ''.join(k[2] for k in kernels) + '.section .rodata,"a"\n' + ''.join('.p2align 6\n' + k[3] for k in kernels)
    open(path, 'w').write(out)
```

```python
from mbcommon import *
IT = 200
def mix(ne, nf, reps, op='v_fma_f32 v{d}, v{a}, v2, v3'):
    L = []; j = 0
    for r in range(reps):
        for i in range(ne):
            L.append(f'v_exp_f32 v{48 + (j % 16)}, v{8 + (j % 16)}'); j += 1
        for i in range(nf):
            L.append(op.format(d=80 + (j % 32), a=8 + (j % 32))); j += 1
    return ''.join('    ' + x + '\n' for x in L)
ADD = 'v_add_f32 v{d}, v{a}, v2'
FMAC = 'v_fmac_f32 v{d}, v{a}, v2'
for w in (8, 16):
    vg = 128
    K = lambda n, b: kern(f'{n}_w{w}_i{IT}_kernel', b, IT * 8 // w, w, vg)
    K('e128', mix(1, 0, 128))
    K('fma128', mix(0, 1, 128))
    K('fmac128', mix(0, 1, 128, FMAC))
    K('add128', mix(0, 1, 128, ADD))
    K('lshladd128', mix(0, 1, 128, 'v_lshl_add_u32 v{d}, v{a}, 23, v3'))
    K('addu128', mix(0, 1, 128, 'v_add_u32 v{d}, v{a}, v3'))
    K('and128', mix(0, 1, 128, 'v_and_b32 v{d}, v{a}, v3'))
    K('fract128', mix(0, 1, 128, 'v_fract_f32 v{d}, v{a}'))
    K('fmaak128', mix(0, 1, 128, 'v_fmaak_f32 v{d}, v{a}, v2, 0x3f317218'))
    K('mul128', mix(0, 1, 128, 'v_mul_f32 v{d}, v{a}, v2'))
    K('e1a1x64', mix(1, 1, 64, ADD))
    K('e1a2x64', mix(1, 2, 64, ADD))
    K('e1a4x64', mix(1, 4, 64, ADD))
    K('e8a32x8', mix(8, 32, 8, ADD))
    body = f'    s_bitcmp1_b32 s20, 2\n    s_cbranch_scc1 LA_{w}\n' + mix(0, 1, 256, ADD) + f'    s_branch LB_{w}\nLA_{w}:\n' + mix(1, 0, 128) + f'LB_{w}:\n'
    K('role_e128_a256', body)
emit(sys.argv[1])
```
